```python
import torch

def _softmax(x, axis=-1):
    return torch.softmax(x, dim=axis)
def _gelu(x):
    return torch.nn.functional.gelu(x, approximate="tanh")
def _silu(x):
    return torch.nn.functional.silu(x)
def _sigmoid(x):
    return torch.sigmoid(x)
def _layernorm(x, axis=-1, eps=1e-5):
    m = x.mean(dim=axis, keepdim=True)
    v = x.var(dim=axis, keepdim=True, unbiased=False)
    return (x - m) / torch.sqrt(v + eps)
def _scatter_add(tgt, idx, src, axis=0):
    return tgt.clone().index_add_(axis, idx, src)
def _segment_sum(src, seg, n):
    out = torch.zeros((n,) + src.shape[1:], dtype=src.dtype)
    return out.index_add_(0, seg, src)
def _pad(x, pw):
    flat = tuple(v for pair in reversed(pw) for v in pair)
    return torch.nn.functional.pad(x, flat)

kernel_name = 'concat_heads__gqa_block_cached__mha_block_cached__near_ridge'

def setup_inputs():

    _w = (lambda a: (lambda t: t.to(torch.bfloat16) if t.is_floating_point() else t)(torch.as_tensor(a)))
    def _A_setup():
        B, Sq, D = 8, 96, 512
        Hq, Hkv, Sk, Dh = 32, 32, 512, 128
        assert Hq % Hkv == 0, (Hq, Hkv)
        return {
            "x": _w((lambda *s: torch.randn(*s, dtype=torch.bfloat16) * 0.8)(B, Sq, D)),
            "k_cache": _w((lambda *s: torch.randn(*s, dtype=torch.bfloat16) * 0.8)(B, Hkv, Sk, Dh)),
            "v_cache": _w((lambda *s: torch.randn(*s, dtype=torch.bfloat16) * 0.05)(B, Hkv, Sk, Dh)),
            "wq": _w((lambda *s: torch.randn(*s, dtype=torch.bfloat16) * 0.8)(D, Hq * Dh) * (D ** -0.5)),
            "wo": _w((lambda *s: torch.randn(*s, dtype=torch.bfloat16) * 0.05)(Hq * Dh, D) * ((Hq * Dh) ** -0.5)),
        }
    _A_in = _A_setup()

    def _B_setup():
        B, Sq, D = 8, 96, 512
        H, Sk, Dh = 32, 512, 128
        return {
            "x": _w((lambda *s: torch.randn(*s, dtype=torch.bfloat16) * 0.8)(B, Sq, D)),
            "k_cache": _w((lambda *s: torch.randn(*s, dtype=torch.bfloat16) * 0.8)(B, H, Sk, Dh)),
            "v_cache": _w((lambda *s: torch.randn(*s, dtype=torch.bfloat16) * 0.05)(B, H, Sk, Dh)),
            "wq": _w((lambda *s: torch.randn(*s, dtype=torch.bfloat16) * 0.8)(D, H * Dh) * (D ** -0.5)),
            "wo": _w((lambda *s: torch.randn(*s, dtype=torch.bfloat16) * 0.05)(H * Dh, D) * ((H * Dh) ** -0.5)),
        }
    _B_in = _B_setup()

    return {
        "A_x": _A_in["x"],
        "A_k_cache": _A_in["k_cache"],
        "A_v_cache": _A_in["v_cache"],
        "A_wq": _A_in["wq"],
        "A_wo": _A_in["wo"],
        "B_x": _B_in["x"],
        "B_k_cache": _B_in["k_cache"],
        "B_v_cache": _B_in["v_cache"],
        "B_wq": _B_in["wq"],
        "B_wo": _B_in["wo"],
    }

def reference(A_x, A_k_cache, A_v_cache, A_wq, A_wo, B_x, B_k_cache, B_v_cache, B_wq, B_wo):
    def _A_ref(x, k_cache, v_cache, wq, wo):
        B, Sq, D = x.shape
        Hq, Dh = 32, 128
        Hkv = k_cache.shape[1]
        rep = Hq // Hkv
        q = (lambda x, *d: x.permute(*d))((x @ wq).reshape(B, Sq, Hq, Dh), 0, 2, 1, 3)
        k = (lambda x, n, axis: torch.repeat_interleave(x, n, dim=axis))(k_cache, rep, axis=1)
        v = (lambda x, n, axis: torch.repeat_interleave(x, n, dim=axis))(v_cache, rep, axis=1)
        scores = torch.einsum("bhqd,bhkd->bhqk", q, k) * (Dh ** -0.5)
        p = _softmax(scores, axis=-1)
        o = torch.einsum("bhqk,bhkd->bhqd", p, v)
        return (lambda x, *d: x.permute(*d))(o, 0, 2, 1, 3).reshape(B, Sq, Hq * Dh) @ wo

    def _B_ref(x, k_cache, v_cache, wq, wo):
        B, Sq, D = x.shape
        H, Dh = 32, 128
        q = (lambda x, *d: x.permute(*d))((x @ wq).reshape(B, Sq, H, Dh), 0, 2, 1, 3)
        scores = torch.einsum("bhqd,bhkd->bhqk", q, k_cache) * (Dh ** -0.5)
        p = _softmax(scores, axis=-1)
        o = torch.einsum("bhqk,bhkd->bhqd", p, v_cache)
        return (lambda x, *d: x.permute(*d))(o, 0, 2, 1, 3).reshape(B, Sq, H * Dh) @ wo

    a = _A_ref(A_x, A_k_cache, A_v_cache, A_wq, A_wo)
    b = _B_ref(B_x, B_k_cache, B_v_cache, B_wq, B_wo)
    return torch.concatenate([a, b], axis=-1)
```

```python
NAME = "concat_heads__gqa_block_cached__mha_block_cached__near_ridge_kernel"
def header(launch_lines):
    s = ""
    for l in launch_lines: s += l + "\n"
    s += '.amdgcn_target "amdgcn-amd-amdhsa--gfx950"\n.text\n'
    return s
def kstart(name):
    return f".globl {name}\n.p2align 8\n.type {name},@function\n{name}:\n"
def kdesc(name, vgpr=256, sgpr=102, accum=256, extra=""):
    return f""".section .rodata,"a"
.p2align 6
.amdhsa_kernel {name}
  .amdhsa_next_free_vgpr {vgpr}
  .amdhsa_next_free_sgpr {sgpr}
  .amdhsa_accum_offset {accum}
  .amdhsa_group_segment_fixed_size 0
  .amdhsa_kernarg_size 104
  .amdhsa_user_sgpr_count 2
  .amdhsa_user_sgpr_kernarg_segment_ptr 1
  .amdhsa_system_sgpr_workgroup_id_x 1
{extra}.end_amdhsa_kernel
.text
"""
```

```python
import re

def regs_of(tok):
    tok = tok.strip()
    neg = tok.lstrip('-')
    if neg.startswith('abs(') : neg = neg[4:-1]
    if neg.startswith('|'): neg = neg.strip('|')
    m = re.fullmatch(r'([vas])\[(\d+):(\d+)\]', neg)
    if m: return [(m.group(1), i) for i in range(int(m.group(2)), int(m.group(3)) + 1)]
    m = re.fullmatch(r'([vas])(\d+)', neg)
    if m: return [(m.group(1), int(m.group(2)))]
    if neg == 'vcc': return [('s', 'vcc')]
    if neg == 'm0': return [('s', 'm0')]
    if neg == 'exec': return [('s', 'exec')]
    return []

TRANS = ('v_exp_f32', 'v_log_f32', 'v_rcp_f32', 'v_rsq_f32', 'v_sqrt_f32')

class Ins:
    def __init__(self, text):
        self.text = text
        t = text.split(';')[0].strip()
        self.label = t.endswith(':')
        self.op = t.split()[0] if t else ''
        rest = t[len(self.op):].strip()
        ops = [o.strip() for o in re.split(r',(?![^\[]*\])', rest)] if rest else []
        if ops:
            parts = ops[-1].split()
            ops[-1] = parts[0] if parts else ''
            self.mods = parts[1:]
        else: self.mods = []
        self.ops = ops
        op = self.op
        self.kind = 'other'
        self.w = []; self.r = []
        self.srcC = []; self.srcAB = []
        if op.startswith('v_mfma'):
            self.kind = 'mfma'
            self.w = regs_of(ops[0]); self.srcAB = regs_of(ops[1]) + regs_of(ops[2]); self.srcC = regs_of(ops[3])
            self.r = self.srcAB + self.srcC
            self.passes = 4 if '16x16x32' in op else 8
        elif op.startswith('v_'):
            self.kind = 'valu'
            if op.startswith('v_cmp'):
                self.w = regs_of(ops[0]); self.r = sum((regs_of(o) for o in ops[1:]), [])
            elif op.startswith('v_permlane') and 'swap' in op:
                self.w = regs_of(ops[0]) + regs_of(ops[1]); self.r = list(self.w)
            elif op.startswith('v_readfirstlane') or op.startswith('v_readlane'):
                self.w = regs_of(ops[0]); self.r = sum((regs_of(o) for o in ops[1:]), [])
            elif op.startswith('v_add_co') or op.startswith('v_addc_co'):
                self.w = regs_of(ops[0]) + regs_of(ops[1]); self.r = sum((regs_of(o) for o in ops[2:]), [])
            else:
                self.w = regs_of(ops[0]); self.r = sum((regs_of(o) for o in ops[1:]), [])
                if op.startswith('v_fmac') or op.startswith('v_pk_fmac'): self.r += self.w
                if op.startswith('v_cndmask') and len(ops) == 3: self.r += [('s', 'vcc')]
        elif op.startswith('ds_'):
            self.kind = 'ds'
            if op.startswith('ds_read') or op.startswith('ds_bpermute') or op.startswith('ds_swizzle'):
                self.w = regs_of(ops[0]); self.r = sum((regs_of(o) for o in ops[1:]), [])
            else:
                self.r = sum((regs_of(o) for o in ops), [])
        elif op.startswith('buffer_') or op.startswith('global_'):
            self.kind = 'vmem'
            self.lds = 'lds' in self.mods
            if op in ('buffer_inv', 'buffer_wbl2'):
                pass
            elif 'load' in op and not self.lds:
                self.w = regs_of(ops[0]); self.r = sum((regs_of(o) for o in ops[1:]), [])
            elif 'atomic' in op and 'sc0' in self.mods:
                self.w = regs_of(ops[0]); self.r = sum((regs_of(o) for o in ops[1:]), [])
            else:
                self.r = sum((regs_of(o) for o in ops), [])
            if self.lds: self.r += [('s', 'm0')]
            self.wide_store = ('store' in op and ('x4' in op or 'x3' in op))
            if self.wide_store:
                self.sdata = regs_of(ops[0]) if op.startswith('buffer_') else regs_of(ops[1])
        elif op.startswith('s_'):
            self.kind = 'salu'
            if op.startswith(('s_cmp', 's_cbranch', 's_branch', 's_waitcnt', 's_barrier', 's_nop', 's_endpgm', 's_sleep', 's_setprio', 's_bitcmp')):
                self.r = sum((regs_of(o) for o in ops), [])
            else:
                self.w = regs_of(ops[0]) if ops else []; self.r = sum((regs_of(o) for o in ops[1:]), [])
    def states(self):
        if self.label or not self.op: return 0
        if self.op == 's_nop': return int(self.ops[0], 0) + 1
        return 1

def required(prod, cons):
    need = 0
    pw = set(prod.w); cr = set(cons.r); cw = set(cons.w)
    if prod.kind == 'valu':
        vw = {x for x in pw if x[0] in 'va'}
        sw = {x for x in pw if x[0] == 's'}
        if cons.kind == 'mfma' and vw & cr: need = max(need, 2)
        if cons.kind == 'valu':
            if cons.op.startswith('v_permlane') and vw & cr: need = max(need, 2)
            if ('dpp' in cons.op or any(m.startswith(('row_', 'quad_perm', 'wave_')) for m in cons.mods)) and vw & cr: need = max(need, 2)
            if cons.op.startswith(('v_readfirstlane', 'v_readlane')) and vw & cr: need = max(need, 1)
            if prod.op.startswith(TRANS) and not cons.op.startswith(TRANS) and vw & cr: need = max(need, 1)
            if sw & cr: need = max(need, 2)
            if cons.op.startswith(('v_readlane', 'v_writelane')) and sw & cr: need = max(need, 4)
        if cons.kind == 'vmem' and sw & cr: need = max(need, 5)
        if cons.kind == 'salu' and sw & cr: need = max(need, 1)
        if ('s', 'exec') in pw and cons.kind == 'mfma': need = max(need, 4)
    if prod.kind == 'salu':
        if ('s', 'm0') in pw and cons.kind == 'vmem' and getattr(cons, 'lds', False): need = max(need, 1)
    if prod.kind == 'mfma':
        p = prod.passes
        big = {4: 8, 8: 12}[p]
        if cons.kind == 'mfma':
            if pw & set(cons.srcAB): need = max(need, big)
            if pw & set(cons.srcC):
                if not (cons.srcC == prod.w and cons.passes == p): need = max(need, {4: 6, 8: 10}[p])
            elif pw & cw: need = max(need, big)
        elif cons.kind in ('valu', 'ds', 'vmem'):
            if pw & (cr | cw): need = max(need, big)
        if cons.kind == 'valu' and set(prod.srcC) & cw: need = max(need, {4: 3, 8: 7}[p])
    if prod.kind == 'vmem' and getattr(prod, 'wide_store', False):
        if set(prod.sdata) & cw: need = max(need, 2 if cons.kind == 'valu' else 1)
    if prod.kind == 'ds' and prod.op.startswith('ds_write') and cons.kind == 'valu':
        pass
    return need

class Gen:
    def __init__(self):
        self.ins = []
        self.vmq = []
        self.lgq = []
        self.maxvm = 0
    def e(self, text):
        for line in text.split('\n'):
            line = line.strip()
            if not line: continue
            self.ins.append(Ins(line))
    def c(self, text):
        i = Ins(''); i.text = '; ' + text; self.ins.append(i)
    def vm(self, text, tag):
        self.e(text); self.vmq.append(tag); self.maxvm = max(self.maxvm, len(self.vmq))
        assert len(self.vmq) <= 63, "too many outstanding vmem"
    def ds(self, text, tag):
        self.e(text); self.lgq.append(tag)
    def _n(self, q, tags):
        idx = -1
        for i, t in enumerate(q):
            if t in tags: idx = i
        return idx
    def wait(self, vm=None, lg=None, extra=''):
        parts = []
        if vm is not None:
            if vm == 'all': idx = len(self.vmq) - 1
            else:
                tags = vm if isinstance(vm, (list, set)) else [vm]
                idx = self._n(self.vmq, tags)
            if idx >= 0:
                n = len(self.vmq) - 1 - idx
                parts.append(f'vmcnt({n})'); self.vmq = self.vmq[idx + 1:]
        if lg is not None:
            if lg == 'all': idx = len(self.lgq) - 1
            else:
                tags = lg if isinstance(lg, (list, set)) else [lg]
                idx = self._n(self.lgq, tags)
            if idx >= 0:
                n = len(self.lgq) - 1 - idx
                n = min(n, 15)
                parts.append(f'lgkmcnt({n})'); self.lgq = self.lgq[len(self.lgq) - n:] if n else []
        if parts: self.e('s_waitcnt ' + ' '.join(parts))
    def finalize(self):
        out = []
        WIN = 24
        nn = 0
        for ins in self.ins:
            if ins.op and not ins.label:
                need = 0
                dist = 0
                for prev in reversed(out):
                    if dist >= WIN: break
                    if prev.op and not prev.label:
                        r = required(prev, ins)
                        if r > dist: need = max(need, r - dist)
                    dist += prev.states()
                while need > 0:
                    k = min(need, 16)
                    out.append(Ins(f's_nop {k-1}')); need -= k; nn += 1
            out.append(ins)
        self.nops = nn
        return '\n'.join(('' if i.label else '    ') + i.text for i in out) + '\n'
```

```python
import sys, math
from gen_core import Gen
from asmlib import *

SLOT = 16384
SCR = 7 * SLOT
RING = [6, 4, 5, 0, 1, 2, 3]
LDS_BYTES = 163840
C_SCALE = math.log2(math.e) / math.sqrt(128.0)
import struct
def f2u(x): return struct.unpack('<I', struct.pack('<f', x))[0]

S_X, S_K, S_V, S_WQ, S_WO, S_OUT, S_WS = 8, 12, 16, 20, 24, 28, 32
S_DBG = 36
S_W, S_QH, S_KH, S_BR, S_B, S_H0 = 40, 41, 42, 43, 44, 45
S_KVOFF = 46
S_T0, S_T1, S_T2, S_T3 = 48, 49, 50, 51
S_C = 52
S_ROT = 53
S_WQOFF, S_XOFF = 54, 55
S_OB, S_MH, S_NT = 56, 57, 58
S_M0W4, S_M0W8, S_M0W3 = 59, 60, 61
S_OST = 62
S_TS = 64
S_TSB = 66

def srd(g, s, lo, hi, size):
    g.e(f"s_mov_b32 s{s}, s{lo}\ns_mov_b32 s{s+1}, s{hi}\ns_mov_b32 s{s+2}, {size}\ns_mov_b32 s{s+3}, 0x20000")

def vr(a, n=4): return f"v[{a}:{a+n-1}]"
def ar(a, n=4): return f"a[{a}:{a+n-1}]"

class K:
    def __init__(self, opts):
        self.g = Gen(); self.o = opts
        self.nstamp = 0

    def prologue(self, endlabel):
        g = self.g
        g.e(f"s_cmp_ge_u32 s2, 256\ns_cbranch_scc1 {endlabel}")
        g.e("s_and_b32 s3, s2, 7          ; xcd")
        g.e(f"s_lshr_b32 s{S_BR}, s3, 2")
        g.e(f"s_mul_i32 s4, s{S_BR}, 40")
        g.e("s_add_u32 s4, s0, s4\ns_addc_u32 s5, s1, 0")
        g.e("s_load_dwordx8 s[72:79], s[4:5], 0      ; x, k, v, wq")
        g.e("s_load_dwordx2 s[80:81], s[4:5], 32     ; wo")
        g.e("s_load_dwordx4 s[84:87], s[0:1], 80")
        g.e("s_load_dwordx2 s[88:89], s[0:1], 96     ; ws")
        if self.o.get('stamps'):
            g.e(f"s_memtime s[{S_TSB}:{S_TSB+1}]")
        g.e("v_lshrrev_b32 v1, 6, v0")
        g.e("v_and_b32 v0, 63, v0                    ; lane")
        g.e(f"v_readfirstlane_b32 s{S_W}, v1")
        g.e("s_lshr_b32 s6, s2, 3         ; idx")
        g.e("s_and_b32 s7, s3, 3          ; hq")
        g.e(f"s_lshr_b32 s{S_B}, s6, 2")
        g.e(f"s_and_b32 s{S_T0}, s6, 3     ; hp")
        g.e(f"s_lshl_b32 s{S_H0}, s7, 3")
        g.e(f"s_lshl_b32 s{S_T1}, s{S_T0}, 1")
        g.e(f"s_add_u32 s{S_H0}, s{S_H0}, s{S_T1}")
        g.e(f"s_add_u32 s{S_ROT}, s{S_B}, s{S_T1}\ns_and_b32 s{S_ROT}, s{S_ROT}, 7")
        g.e(f"s_lshr_b32 s{S_OB}, s6, 4\ns_lshl_b32 s{S_T1}, s7, 1\ns_add_u32 s{S_OB}, s{S_OB}, s{S_T1}")
        g.e(f"s_lshr_b32 s{S_MH}, s6, 3\ns_and_b32 s{S_MH}, s{S_MH}, 1\ns_and_b32 s{S_NT}, s6, 7")
        g.e(f"s_and_b32 s{S_QH}, s{S_W}, 1\ns_lshr_b32 s{S_KH}, s{S_W}, 1")
        g.e(f"s_lshl_b32 s{S_M0W4}, s{S_W}, 12\ns_lshl_b32 s{S_M0W8}, s{S_W}, 13\ns_mul_i32 s{S_M0W3}, s{S_W}, 3072")
        g.e(f"s_lshl_b32 s{S_KVOFF}, s{S_B}, 5\ns_add_u32 s{S_KVOFF}, s{S_KVOFF}, s{S_H0}\ns_lshl_b32 s{S_KVOFF}, s{S_KVOFF}, 17\ns_add_u32 s{S_KVOFF}, s{S_KVOFF}, s{S_M0W4}")
        g.e(f"s_lshl_b32 s{S_WQOFF}, s{S_W}, 17\ns_lshl_b32 s{S_T1}, s{S_H0}, 8\ns_add_u32 s{S_WQOFF}, s{S_WQOFF}, s{S_T1}")
        g.e(f"s_mul_i32 s{S_XOFF}, s{S_B}, 98304\ns_mul_i32 s{S_T1}, s{S_W}, 24576\ns_add_u32 s{S_XOFF}, s{S_XOFF}, s{S_T1}")
        g.e(f"s_lshl_b32 s{S_OST}, s{S_BR}, 3\ns_add_u32 s{S_OST}, s{S_OST}, s{S_B}\ns_lshl_b32 s{S_OST}, s{S_OST}, 5\ns_add_u32 s{S_OST}, s{S_OST}, s{S_H0}\ns_mul_i32 s{S_OST}, s{S_OST}, 24576")
        g.e(f"s_mul_i32 s{S_T1}, s{S_QH}, 12288\ns_add_u32 s{S_OST}, s{S_OST}, s{S_T1}\ns_lshl_b32 s{S_T1}, s{S_KH}, 11\ns_add_u32 s{S_OST}, s{S_OST}, s{S_T1}")
        g.e(f"s_mov_b32 s{S_C}, {f2u(C_SCALE):#x}")

    def srds(self):
        g = self.g
        g.e("s_waitcnt lgkmcnt(0)")
        srd(g, S_X, 72, 73, 786432); srd(g, S_K, 74, 75, 33554432); srd(g, S_V, 76, 77, 33554432)
        srd(g, S_WQ, 78, 79, 4194304); srd(g, S_WO, 80, 81, 4194304); srd(g, S_OUT, 84, 85, 1572864)
        srd(g, S_WS, 88, 89, 268435456)
        g.e(f"s_mov_b32 s{S_DBG}, s86\ns_mov_b32 s{S_DBG+1}, s87")

    def stamp(self, name):
        if not self.o.get('stamps'): return
        g = self.g; n = self.nstamp; self.nstamp += 1
        g.c(f"stamp {n}: {name}")
        g.e(f"s_memtime s[{S_TS}:{S_TS+1}]")
        g.e("s_waitcnt lgkmcnt(0)"); g.lgq = []
        g.e(f"s_sub_u32 s{S_TS}, s{S_TS}, s{S_TSB}")
        g.e(f"v_writelane_b32 v255, s{S_TS}, {n}")
        print("stamp", n, name, file=sys.stderr)

    def stamp_flush(self):
        if not self.o.get('stamps'): return
        g = self.g
        g.e(f"s_lshl_b32 s{S_T0}, s2, 2\ns_add_u32 s{S_T0}, s{S_T0}, s{S_W}\ns_lshl_b32 s{S_T0}, s{S_T0}, 8\ns_add_u32 s{S_T0}, s{S_T0}, {64<<20}")
        g.e(f"v_lshrrev_b32 v254, 2, v{self.VLANE16}")
        g.vm(f"buffer_store_dword v255, v254, s[{S_WS}:{S_WS+3}], s{S_T0} offen", 'stamp')

    VDK = 240
    VDV = 244
    VK0 = 246
    VV0 = 247
    VLANE16 = 248
    def setup_kv_addr(self):
        g = self.g
        g.c("K/V dma voffsets and read bases")
        g.e("v_lshrrev_b32 v2, 4, v0")
        g.e("v_and_b32 v3, 15, v0")
        for i in range(4):
            g.e(f"v_add_u32 v4, {4*i}, v2\nv_xor_b32 v4, v4, v3\nv_lshlrev_b32 v4, 4, v4\nv_lshl_add_u32 v{self.VDK+i}, v2, 8, v4")
        for i in range(2):
            g.e(f"v_add_u32 v4, {4*i}, v2\nv_lshlrev_b32 v4, 1, v4\nv_xor_b32 v4, v4, v3\nv_lshlrev_b32 v4, 4, v4\nv_lshl_add_u32 v{self.VDV+i}, v2, 8, v4")
        g.e(f"s_lshl_b32 s{S_T0}, s{S_KH}, 13")
        g.e(f"v_xor_b32 v4, v2, v3\nv_lshlrev_b32 v4, 4, v4\nv_lshl_add_u32 v4, v3, 8, v4\nv_add_u32 v{self.VK0}, s{S_T0}, v4")
        g.e("v_lshrrev_b32 v4, 2, v0\nv_and_b32 v5, 7, v4\nv_lshlrev_b32 v5, 5, v5\nv_lshl_add_u32 v5, v4, 8, v5")
        g.e("v_and_b32 v6, 3, v0\nv_lshl_add_u32 v5, v6, 3, v5")
        g.e(f"v_add_u32 v5, s{S_T0}, v5\ns_lshl_b32 s{S_T1}, s{S_KH}, 7\nv_xor_b32 v{self.VV0}, s{S_T1}, v5")
        g.e(f"v_lshlrev_b32 v{self.VLANE16}, 4, v0")

    def kv_fill(self, f):
        g = self.g
        if f >= 32: return
        unit, isv, j = f >> 4, (f >> 3) & 1, f & 7
        slot = RING[f % 7]
        g.c(f"fill {f}: {'V' if isv else 'K'}{unit} tile {j} -> slot {slot}")
        g.e(f"s_add_u32 m0, s{S_M0W4}, {slot*SLOT}")
        g.e(f"s_add_u32 s{S_T0}, s{S_KVOFF}, {unit*131072 + j*16384}")
        sr = S_V if isv else S_K
        for i in range(4):
            v = self.VDV + (i & 1) if isv else self.VDK + i
            g.vm(f"buffer_load_dwordx4 v{v}, s[{sr}:{sr+3}], s{S_T0} offen offset:{1024*i} nt lds", ('kv', f))

    VDW = 96
    VDX = 104
    VW0 = 107; VX0 = 108
    VWC = 110
    VXC = 118
    QB_ = 120
    QA_ = 144
    def setup_q_addr(self):
        g = self.g
        g.c("Q-phase dma voffsets")
        g.e("v_lshrrev_b32 v2, 5, v0\nv_and_b32 v3, 31, v0")
        for i in range(8):
            fb = 2 * (i & 1) + 4 * (i >> 2)
            g.e(f"v_add_u32 v4, {fb}, v2\nv_lshlrev_b32 v4, 1, v4\nv_xor_b32 v4, v4, v3\nv_lshlrev_b32 v4, 4, v4\nv_lshl_add_u32 v4, v2, 13, v4")
            g.e(f"v_add_u32 v{self.VDW+i}, {(i&3)*15360}, v4")
        g.e("v_lshrrev_b32 v2, 3, v0\nv_and_b32 v3, 7, v0\nv_lshrrev_b32 v5, 1, v2")
        for j in range(3):
            g.e(f"s_add_u32 s{S_T0}, s{S_W}, {j}\ns_and_b32 s{S_T0}, s{S_T0}, 1\ns_lshl_b32 s{S_T0}, s{S_T0}, 2")
            g.e(f"v_add_u32 v4, s{S_T0}, v5\nv_xor_b32 v4, v4, v3\nv_lshlrev_b32 v4, 4, v4\nv_lshl_add_u32 v4, v2, 10, v4")
            g.e(f"v_add_u32 v{self.VDX+j}, {j*7168}, v4")
        g.e("v_lshrrev_b32 v2, 4, v0\nv_bfe_u32 v3, v0, 2, 2\nv_and_b32 v4, 3, v0")
        g.e("v_lshl_add_u32 v5, v2, 3, v3\nv_lshlrev_b32 v5, 9, v5")
        g.e("v_and_b32 v6, 1, v2\nv_lshl_add_u32 v6, v6, 2, v3\nv_lshl_add_u32 v5, v6, 5, v5\nv_lshl_add_u32 v5, v4, 3, v5")
        g.e(f"s_lshl_b32 s{S_T0}, s{S_KH}, 8\nv_add_u32 v{self.VW0}, s{S_T0}, v5")
        g.e("v_and_b32 v3, 15, v0\nv_lshrrev_b32 v4, 1, v3\nv_xor_b32 v4, v4, v2\nv_lshlrev_b32 v4, 4, v4\nv_lshl_add_u32 v4, v3, 7, v4")
        g.e(f"s_mul_i32 s{S_T0}, s{S_QH}, 6144\nv_add_u32 v{self.VX0}, s{S_T0}, v4")

    def q_fill(self, st):
        g = self.g
        buf = st % 3
        wb, xb = buf * 2 * SLOT, SCR + buf * SLOT
        pol = self.o.get('wpol', '')
        g.c(f"q fill step {st}")
        g.e(f"s_add_u32 s{S_T2}, s{S_ROT}, {st}\ns_and_b32 s{S_T2}, s{S_T2}, 7")
        g.e(f"s_add_u32 m0, s{S_M0W3}, {xb}")
        g.e(f"s_lshl_b32 s{S_T0}, s{S_T2}, 7\ns_add_u32 s{S_T0}, s{S_T0}, s{S_XOFF}")
        for j in range(3):
            g.vm(f"buffer_load_dwordx4 v{self.VDX+j}, s[{S_X}:{S_X+3}], s{S_T0} offen offset:{1024*j} {pol} lds", ('q', st))
        g.e(f"s_lshl_b32 s{S_T0}, s{S_T2}, 19\ns_add_u32 s{S_T0}, s{S_T0}, s{S_WQOFF}")
        for grp in range(2):
            g.e(f"s_add_u32 m0, s{S_M0W8}, {wb + grp*4096}")
            if grp: g.e(f"s_add_u32 s{S_T0}, s{S_T0}, {8*8192}")
            for i in range(4):
                g.vm(f"buffer_load_dwordx4 v{self.VDW+4*grp+i}, s[{S_WQ}:{S_WQ+3}], s{S_T0} offen offset:{1024*i} {pol} lds", ('q', st))

    def q_step(self, st, after_barrier):
        g = self.g
        buf = st % 3
        wb, xb = buf * 2 * SLOT, SCR + buf * SLOT
        g.c(f"==== Q step {st}")
        g.e(f"v_add_u32 v{self.VWC}, {wb}, v{self.VW0}")
        g.e(f"v_add_u32 v{self.VXC}, {xb}, v{self.VX0}")
        for dt in range(1, 8): g.e(f"v_xor_b32 v{self.VWC+dt}, {32*dt}, v{self.VWC}")
        g.e(f"v_xor_b32 v{self.VXC+1}, 64, v{self.VXC}")
        g.wait(vm=('q', st))
        g.e("s_barrier")
        def rd_x(u):
            for qt in range(3):
                g.ds(f"ds_read_b128 {vr(self.QB_ + u*12 + qt*4)}, v{self.VXC+u} offset:{qt*2048}", ('x', u))
        def rd_w(u, dt):
            a = self.QA_ + (dt % 8) * 4
            g.ds(f"ds_read_b64_tr_b16 {vr(a,2)}, v{self.VWC+dt} offset:{u*16384}", ('w', u, dt))
            g.ds(f"ds_read_b64_tr_b16 {vr(a+2,2)}, v{self.VWC+dt} offset:{u*16384+2048}", ('w', u, dt))
        rd_x(0)
        for dt in range(4): rd_w(0, dt)
        after_barrier()
        seq = [(u, dt) for u in range(2) for dt in range(8)]
        LOOK = 4
        for n, (u, dt) in enumerate(seq):
            g.wait(lg=[('x', u), ('w', u, dt)])
            a = self.QA_ + dt * 4
            for qt in range(3):
                acc = (dt * 3 + qt) * 4
                csrc = '0' if (st == 0 and u == 0) else vr(acc)
                g.e(f"v_mfma_f32_16x16x32_bf16 {vr(acc)}, {vr(a)}, {vr(self.QB_ + u*12 + qt*4)}, {csrc}")
                if qt == 0:
                    if n == 2: rd_x(1)
                    if n + LOOK < 16: rd_w(*seq[n + LOOK])

    AQ = [96, 144]
    def q_exchange(self, after_barrier):
        g = self.g
        g.c("==== Q exchange")
        g.e(f"v_lshrrev_b32 v96, 8, v{self.VLANE16}\nv_bfe_u32 v97, v{self.VLANE16}, 4, 4")
        g.e("v_lshrrev_b32 v98, 1, v96\nv_xor_b32 v98, v98, v97\nv_lshlrev_b32 v98, 4, v98\nv_lshl_add_u32 v98, v97, 8, v98")
        g.e("v_and_b32 v99, 1, v96\nv_lshl_add_u32 v98, v99, 3, v98")
        g.e(f"s_mul_i32 s{S_T0}, s{S_QH}, 12288\ns_mul_i32 s{S_T1}, s{S_KH}, 24576\ns_add_u32 s{S_T1}, s{S_T1}, s{S_T0}\ns_add_u32 s{S_T1}, s{S_T1}, {SCR}")
        g.e(f"v_add_u32 v100, s{S_T1}, v98")
        for dt in range(1, 8): g.e(f"v_xor_b32 v{100+dt}, {32*dt}, v100")
        g.e("v_xor_b32 v98, v96, v97\nv_lshlrev_b32 v98, 4, v98\nv_lshl_add_u32 v98, v97, 8, v98")
        g.e(f"s_add_u32 s{S_T0}, s{S_T0}, {SCR}\nv_add_u32 v108, s{S_T0}, v98")
        for t in range(1, 4): g.e(f"v_xor_b32 v{108+t}, {64*t}, v108")
        for dt in range(8):
            for qt in range(3):
                acc = (dt * 3 + qt) * 4
                d = 112 + (dt * 3 + qt) * 2
                g.e(f"v_cvt_pk_bf16_f32 v{d}, v{acc}, v{acc+1}\nv_cvt_pk_bf16_f32 v{d+1}, v{acc+2}, v{acc+3}")
        g.e("s_barrier")
        after_barrier()
        for dt in range(8):
            for qt in range(3):
                d = 112 + (dt * 3 + qt) * 2
                g.ds(f"ds_write_b64 v{100+dt}, {vr(d,2)} offset:{qt*4096}", 'qw')
        g.wait(lg='all')
        g.e("s_barrier")
        for eta in range(2):
            for qt in range(3):
                for t in range(4):
                    g.ds(f"ds_read_b128 {ar(self.AQ[eta] + (qt*4+t)*4)}, v{108+t} offset:{eta*24576 + qt*4096}", ('qr', eta))

    KF = 192
    VKC = 224
    def s_step(self, unit, j, nextfill):
        g = self.g
        f = unit * 16 + j
        slot = RING[f % 7] * SLOT
        g.c(f"==== S{unit} step {j} (fill {f})")
        g.e(f"v_add_u32 v{self.VKC}, {slot}, v{self.VK0}")
        for t in range(1, 4): g.e(f"v_xor_b32 v{self.VKC+t}, {64*t}, v{self.VKC}")
        g.wait(vm=('kv', f), lg='all')
        g.e("s_barrier")
        for tau in range(2):
            for t in range(4):
                g.ds(f"ds_read_b128 {vr(self.KF + (tau*4+t)*4)}, v{self.VKC+t} offset:{tau*4096}", ('k', tau, t))
        nextfill()
        for tau in range(2):
            for t in range(4):
                g.wait(lg=('k', tau, t))
                for qt in range(3):
                    acc = (j * 3 + qt) * 8 + tau * 4
                    csrc = '0' if t == 0 else vr(acc)
                    g.e(f"v_mfma_f32_16x16x32_bf16 {vr(acc)}, {vr(self.KF + (tau*4+t)*4)}, {ar(self.AQ[unit] + (qt*4+t)*4)}, {csrc}")

    VM = 232
    VL = 235
    VT = 192
    def softmax(self, unit):
        g = self.g
        g.c(f"==== softmax {unit}")
        T = self.VT
        def sreg(j, qt, i): return (j * 3 + qt) * 8 + i
        for qt in range(3):
            regs = [sreg(j, qt, i) for j in range(8) for i in range(8)]
            g.e(f"v_max3_f32 v{T+qt*2}, v{regs[0]}, v{regs[1]}, v{regs[2]}")
            g.e(f"v_max3_f32 v{T+qt*2+1}, v{regs[3]}, v{regs[4]}, v{regs[5]}")
            rest = regs[6:]
            k = 0
            while len(rest) >= 2:
                g.e(f"v_max3_f32 v{T+qt*2+k}, v{T+qt*2+k}, v{rest[0]}, v{rest[1]}"); rest = rest[2:]; k ^= 1
            assert not rest
            g.e(f"v_max_f32 v{self.VM+qt}, v{T+qt*2}, v{T+qt*2+1}")
        def xreduce(base, op):
            for sw in ('v_permlane32_swap_b32', 'v_permlane16_swap_b32'):
                for qt in range(3): g.e(f"v_mov_b32 v{T+qt}, v{base+qt}")
                for qt in range(3): g.e(f"{sw} v{T+qt}, v{base+qt}")
                for qt in range(3): g.e(f"{op} v{base+qt}, v{T+qt}, v{base+qt}")
        xreduce(self.VM, 'v_max_f32')
        for qt in range(3): g.e(f"v_mul_f32 v{self.VM+qt}, s{S_C}, v{self.VM+qt}")
        SUM = T + 8
        first = [[True, True] for _ in range(3)]
        for j in range(8):
            for qt in range(3):
                b = sreg(j, qt, 0)
                for i in range(8): g.e(f"v_fma_f32 v{b+i}, v{b+i}, s{S_C}, -v{self.VM+qt}")
                for i in range(8): g.e(f"v_exp_f32 v{b+i}, v{b+i}")
                for i in range(0, 8, 2):
                    ch = (i >> 1) & 1
                    s = SUM + qt * 2 + ch
                    if first[qt][ch]:
                        g.e(f"v_add_f32 v{s}, v{b+i}, v{b+i+1}"); first[qt][ch] = False
                    else:
                        g.e(f"v_add_f32 v{s}, v{s}, v{b+i}\nv_add_f32 v{s}, v{s}, v{b+i+1}")
                p = (j * 3 + qt) * 4
                for i in range(4): g.e(f"v_cvt_pk_bf16_f32 v{p+i}, v{b+2*i}, v{b+2*i+1}")
        for qt in range(3): g.e(f"v_add_f32 v{self.VL+qt}, v{SUM+qt*2}, v{SUM+qt*2+1}")
        xreduce(self.VL, 'v_add_f32')
        g.e(f"s_lshl_b32 s{S_T0}, s{S_W}, 11\ns_add_u32 s{S_T0}, s{S_T0}, {SCR}")
        g.e(f"v_add_u32 v{T}, s{S_T0}, v{self.VLANE16}")
        g.e(f"v_xor_b32 v{self.VST}, 4096, v{T}     ; partner (w^2)")
        g.ds(f"ds_write_b128 v{T}, {vr(self.VM)}", 'st')
        g.ds(f"ds_write_b64 v{T}, {vr(self.VM+4, 2)} offset:1024", 'st')
    VST = 238
    VFA = 249
    VFB = 252

    def stats_combine_read(self):
        g = self.g
        g.ds(f"ds_read_b128 a[240:243], v{self.VST}", 'str')
        g.ds(f"ds_read_b64 a[244:245], v{self.VST} offset:1024", 'str')
    def stats_combine(self):
        g = self.g
        g.c("combine softmax stats with partner wave")
        g.wait(lg='str')
        A, B = self.VFA, self.VFB
        t0, t1 = 238, 239
        for qt in range(3):
            g.e(f"v_accvgpr_read_b32 v{t0}, a{240+qt}")
            g.e(f"v_accvgpr_read_b32 v{t1}, a{243+qt}          ; l_other")
            g.e(f"v_max_f32 v{A+qt}, v{t0}, v{self.VM+qt}")
            g.e(f"v_sub_f32 v{B+qt}, v{t0}, v{A+qt}")
            g.e(f"v_sub_f32 v{A+qt}, v{self.VM+qt}, v{A+qt}")
            g.e(f"v_exp_f32 v{B+qt}, v{B+qt}")
            g.e(f"v_exp_f32 v{A+qt}, v{A+qt}")
            g.e(f"v_mul_f32 v{t1}, v{t1}, v{B+qt}")
            g.e(f"v_fma_f32 v{t1}, v{self.VL+qt}, v{A+qt}, v{t1}")
            g.e(f"v_rcp_f32 v{t1}, v{t1}")
            g.e(f"v_mul_f32 v{A+qt}, v{A+qt}, v{t1}")
            g.e(f"v_mul_f32 v{B+qt}, v{B+qt}, v{t1}")

    OACC = 96
    def pv_step(self, unit, j, nextfill):
        g = self.g
        f = unit * 16 + 8 + j
        slot = RING[f % 7] * SLOT
        g.c(f"==== PV{unit} step {j} (fill {f})")
        g.e(f"v_add_u32 v{self.VKC}, {slot}, v{self.VV0}")
        for d in range(1, 8): g.e(f"v_xor_b32 v{self.VKC+d}, {32*d}, v{self.VKC}")
        g.wait(vm=('kv', f), lg='all')
        g.e("s_barrier")
        def rd(d):
            a = self.KF + d * 4
            g.ds(f"ds_read_b64_tr_b16 {vr(a,2)}, v{self.VKC+d}", ('v', d))
            g.ds(f"ds_read_b64_tr_b16 {vr(a+2,2)}, v{self.VKC+d} offset:4096", ('v', d))
        for d in range(6): rd(d)
        if j == 0: self.stats_combine_read()
        nextfill()
        for d in range(8):
            g.wait(lg=('v', d))
            for qt in range(3):
                acc = self.OACC + (d * 3 + qt) * 4
                csrc = '0' if j == 0 else vr(acc)
                g.e(f"v_mfma_f32_16x16x32_bf16 {vr(acc)}, {vr(self.KF + d*4)}, {vr((j*3+qt)*4)}, {csrc}")
                if qt == 0 and d + 6 < 8: rd(d + 6)
        if j == 0: self.stats_combine()

    def o_exchange(self, unit, after_barrier):
        g = self.g
        g.c(f"==== O exchange + publish unit {unit}")
        T = 192
        g.e(f"s_mul_i32 s{S_T0}, s{S_W}, 12288\ns_add_u32 s{S_T0}, s{S_T0}, {SCR}")
        g.e(f"v_add_u32 v{T}, s{S_T0}, v{self.VLANE16}")
        g.e(f"s_xor_b32 s{S_T1}, s{S_W}, 2\ns_mul_i32 s{S_T1}, s{S_T1}, 12288\ns_add_u32 s{S_T1}, s{S_T1}, {SCR}")
        g.e(f"v_add_u32 v{T+1}, s{S_T1}, v{self.VLANE16}")
        for i in range(12):
            g.ds(f"ds_write_b128 v{T}, {vr(self.OACC + 48 + i*4)} offset:{i*1024}", 'ow')
        for i in range(12):
            qt = i % 3
            for r in range(4):
                a = self.OACC + i * 4 + r
                g.e(f"v_mul_f32 v{a}, v{a}, v{self.VFA+qt}")
        g.wait(lg='all')
        g.e("s_barrier")
        for i in range(12):
            g.ds(f"ds_read_b128 {vr(i*4)}, v{T+1} offset:{i*1024}", ('or', i))
        after_barrier()
        pol = self.o.get('opol', '')
        g.e(f"s_add_u32 s{S_T0}, s{S_OST}, {unit*24576}")
        for ks in range(2):
            for qt in range(3):
                dst = 48 + (ks * 3 + qt) * 4
                for h in range(2):
                    i = (2 * ks + h) * 3 + qt
                    g.wait(lg=('or', i))
                    for r in range(4):
                        a = self.OACC + i * 4 + r
                        g.e(f"v_fma_f32 v{a}, v{i*4+r}, v{self.VFB+qt}, v{a}")
                    a = self.OACC + i * 4
                    g.e(f"v_cvt_pk_bf16_f32 v{dst+2*h}, v{a}, v{a+1}\nv_cvt_pk_bf16_f32 v{dst+2*h+1}, v{a+2}, v{a+3}")
                if qt == 0: so = S_T0
                else:
                    g.e(f"s_add_u32 s{S_T1+qt-1}, s{S_T0}, {qt*4096}"); so = S_T1 + qt - 1
                g.vm(f"buffer_store_dwordx4 {vr(dst)}, v{self.VLANE16}, s[{S_WS}:{S_WS+3}], s{so} offen offset:{ks*1024} {pol}", ('ost', unit))

    OPACC = 192
    def setup_op_addr(self, VDO, VO0):
        g = self.g
        g.c("out-proj addresses")
        g.e("v_lshrrev_b32 v2, 3, v0\nv_and_b32 v3, 7, v0\nv_and_b32 v4, 6, v2\nv_xor_b32 v4, v4, v3\nv_lshlrev_b32 v4, 4, v4\nv_lshl_add_u32 v4, v2, 10, v4")
        for j in range(4): g.e(f"v_add_u32 v{VDO+j}, {j*7168}, v4")
        g.e("v_lshrrev_b32 v2, 2, v0\nv_bfe_u32 v3, v0, 3, 2\nv_lshlrev_b32 v3, 5, v3\nv_lshl_add_u32 v3, v2, 7, v3\nv_and_b32 v4, 3, v0")
        g.e(f"v_lshl_add_u32 v{VO0}, v4, 3, v3")

def build_two_kernel(opts):
    k = K(opts); g = k.g
    k.prologue("L_end1")
    k.setup_q_addr()
    k.setup_kv_addr()
    k.srds()
    k.q_fill(0); k.kv_fill(0); k.q_fill(1)
    k.stamp("issued first")
    for st in range(8):
        def ab(st=st):
            if st + 2 < 8: k.q_fill(st + 2)
            elif st == 6: k.kv_fill(1); k.kv_fill(2)
            elif st == 7: k.kv_fill(3); k.kv_fill(4)
        k.q_step(st, ab)
        if st in (0, 7): k.stamp(f"q step {st} done")
    k.q_exchange(lambda: (k.kv_fill(5), k.kv_fill(6)))
    k.stamp("q exch")
    nf = [7]
    def nextfill(first=False):
        k.kv_fill(nf[0]); nf[0] += 1
    for unit in range(2):
        for j in range(8):
            f = unit * 16 + j
            k.s_step(unit, j, (lambda: None) if f == 0 else nextfill)
        k.stamp(f"S{unit}")
        k.softmax(unit)
        k.stamp(f"SM{unit}")
        for j in range(8):
            k.pv_step(unit, j, nextfill)
        k.stamp(f"PV{unit}")
        k.o_exchange(unit, lambda: None)
        k.stamp(f"OX{unit}")
    k.stamp_flush()
    g.e("s_waitcnt vmcnt(0)")
    g.e("L_end1:\ns_endpgm")
    t1 = g.finalize()
    print("k1 nops", g.nops, "maxvm", g.maxvm, "ninstr", len(g.ins), file=sys.stderr)

    o2 = dict(opts); o2['stamps'] = False
    k = K(o2); g = k.g
    k.prologue("L_end2")
    VDO, VO0, VOC, L16 = 200, 204, 208, 212
    k.setup_op_addr(VDO, VO0)
    g.e(f"v_lshlrev_b32 v{L16}, 4, v0")
    k.srds()
    SOB, SWB, SRHO = 70, 71, 63
    g.e(f"s_lshl_b32 s{SOB}, s{S_BR}, 3\ns_add_u32 s{SOB}, s{SOB}, s{S_OB}\ns_mul_i32 s{SOB}, s{SOB}, {32*24576}\ns_mul_i32 s{S_T0}, s{S_MH}, 12288\ns_add_u32 s{SOB}, s{SOB}, s{S_T0}")
    g.e(f"s_mul_i32 s{S_T0}, s{S_W}, {8*24576}\ns_add_u32 s{SOB}, s{SOB}, s{S_T0}")
    g.e(f"s_lshl_b32 s{SWB}, s{S_W}, 20\ns_lshl_b32 s{S_T0}, s{S_NT}, 7\ns_add_u32 s{SWB}, s{SWB}, s{S_T0}")
    g.e(f"s_lshr_b32 s{SRHO}, s2, 6\ns_lshl_b32 s{SRHO}, s{SRHO}, 1\ns_add_u32 s{SRHO}, s{SRHO}, s{S_NT}\ns_and_b32 s{SRHO}, s{SRHO}, 7")
    g.e(f"s_lshl_b32 s69, s{S_W}, 15")
    NH = 8
    def op_fill(i):
        g.c(f"op fill {i}")
        g.e(f"s_add_u32 s{S_T2}, s{SRHO}, {i}\ns_and_b32 s{S_T2}, s{S_T2}, 7")
        g.e(f"s_lshl_b32 s{S_T0}, s{S_T2}, 17\ns_add_u32 s{S_T0}, s{S_T0}, s{SWB}")
        for grp in range(4):
            g.e(f"s_add_u32 m0, s69, {(i&1)*SLOT + grp*4096}")
            if grp: g.e(f"s_add_u32 s{S_T0}, s{S_T0}, 32768")
            for j in range(4):
                g.vm(f"buffer_load_dwordx4 v{VDO+j}, s[{S_WO}:{S_WO+3}], s{S_T0} offen offset:{1024*j} lds", ('wo', i))
        g.e(f"s_mul_i32 s{S_T0}, s{S_T2}, 24576\ns_add_u32 s{S_T0}, s{S_T0}, s{SOB}")
        for qt in range(3):
            if qt: g.e(f"s_add_u32 s{S_T0}, s{S_T0}, 4096")
            for ks in range(4):
                g.vm(f"buffer_load_dwordx4 {vr((i&1)*48 + (qt*4+ks)*4)}, v{L16}, s[{S_WS}:{S_WS+3}], s{S_T0} offen offset:{ks*1024}", ('wo', i))
    op_fill(0); op_fill(1)
    AF = 96
    for i in range(NH):
        g.c(f"==== OP head {i}")
        g.e(f"s_add_u32 s{S_T3}, s69, {(i&1)*SLOT}")
        g.e(f"v_add_u32 v{VOC}, s{S_T3}, v{VO0}")
        for nu in range(1, 4): g.e(f"v_xor_b32 v{VOC+nu}, {32*nu}, v{VOC}")
        g.wait(vm=('wo', i))
        seq = [(ks, nu) for ks in range(4) for nu in range(4)]
        def rd(n):
            ks, nu = seq[n]; a = AF + (n % 8) * 4
            g.ds(f"ds_read_b64_tr_b16 {vr(a,2)}, v{VOC+nu} offset:{ks*4096}", ('a', n))
            g.ds(f"ds_read_b64_tr_b16 {vr(a+2,2)}, v{VOC+nu} offset:{ks*4096+2048}", ('a', n))
        for n in range(6): rd(n)
        for n, (ks, nu) in enumerate(seq):
            g.wait(lg=('a', n))
            for qt in range(3):
                acc = k.OPACC + (nu * 3 + qt) * 4
                csrc = '0' if (i == 0 and ks == 0) else ar(acc)
                g.e(f"v_mfma_f32_16x16x32_bf16 {ar(acc)}, {vr(AF + (n%8)*4)}, {vr((i&1)*48 + (qt*4+ks)*4)}, {csrc}")
                if qt == 0 and n + 6 < 16: rd(n + 6)
        if i + 2 < NH:
            op_fill(i + 2)
    g.c("==== final reduce")
    g.e("s_barrier")
    g.e(f"s_mul_i32 s{S_T0}, s{S_W}, 12288\nv_add_u32 v100, s{S_T0}, v{L16}")
    for i in range(12):
        g.ds(f"ds_write_b128 v100, {ar(k.OPACC + i*4)} offset:{i*1024}", 'fw')
    g.wait(lg='all')
    g.e("s_barrier")
    g.e(f"s_mul_i32 s{S_T0}, s{S_W}, 3072\nv_add_u32 v100, s{S_T0}, v{L16}")
    for src in range(4):
        for qt in range(3):
            g.ds(f"ds_read_b128 {vr((src*3+qt)*4)}, v100 offset:{src*12288 + qt*1024}", ('fr', src))
    g.e(f"v_bfe_u32 v101, v{L16}, 4, 4\nv_lshrrev_b32 v102, 8, v{L16}\nv_lshlrev_b32 v101, 11, v101\nv_lshl_add_u32 v101, v102, 3, v101")
    g.e(f"s_mul_i32 s{S_T0}, s{S_OB}, {96*2048}\ns_mul_i32 s{S_T1}, s{S_MH}, {48*2048}\ns_add_u32 s{S_T0}, s{S_T0}, s{S_T1}")
    g.e(f"s_lshl_b32 s{S_T1}, s{S_BR}, 10\ns_add_u32 s{S_T0}, s{S_T0}, s{S_T1}\ns_lshl_b32 s{S_T1}, s{S_NT}, 7\ns_add_u32 s{S_T0}, s{S_T0}, s{S_T1}\ns_lshl_b32 s{S_T1}, s{S_W}, 5\ns_add_u32 s{S_T0}, s{S_T0}, s{S_T1}")
    g.wait(lg='all')
    for qt in range(3):
        for r in range(4):
            a = qt * 4 + r
            g.e(f"v_add_f32 v{a}, v{a}, v{12+a}\nv_add_f32 v{24+a}, v{24+a}, v{36+a}\nv_add_f32 v{a}, v{a}, v{24+a}")
        g.e(f"v_cvt_pk_bf16_f32 v{48+qt*2}, v{qt*4}, v{qt*4+1}\nv_cvt_pk_bf16_f32 v{49+qt*2}, v{qt*4+2}, v{qt*4+3}")
        if qt: g.e(f"s_add_u32 s{S_T0}, s{S_T0}, {16*2048}")
        g.vm(f"buffer_store_dwordx2 {vr(48+qt*2,2)}, v101, s[{S_OUT}:{S_OUT+3}], s{S_T0} offen", 'out')
    g.e("s_waitcnt vmcnt(0)")
    g.e("L_end2:\ns_endpgm")
    t2 = g.finalize()
    print("k2 nops", g.nops, "maxvm", g.maxvm, "ninstr", len(g.ins), file=sys.stderr)
    s = header([f"; @launch kernel=attn_kernel grid=(256,1,1) block=(256,1,1) lds={LDS_BYTES}",
                f"; @launch kernel=oproj_kernel grid=(256,1,1) block=(256,1,1) lds={131072}"])
    s += kstart("attn_kernel") + t1 + kstart("oproj_kernel") + t2
    s += kdesc("attn_kernel", 512, 102, 256) + kdesc("oproj_kernel", 512, 102, 256)
    return s

if __name__ == "__main__":
    out = sys.argv[1]
    opts = {}
    for a in sys.argv[2:]:
        kk, _, vv = a.partition('=')
        opts[kk] = vv if vv else True
    open(out, "w").write(build_two_kernel(opts))
```

```python
import re

def regs_of(tok):
    tok = tok.strip()
    neg = tok.lstrip('-')
    if neg.startswith('abs(') : neg = neg[4:-1]
    if neg.startswith('|'): neg = neg.strip('|')
    m = re.fullmatch(r'([vas])\[(\d+):(\d+)\]', neg)
    if m: return [(m.group(1), i) for i in range(int(m.group(2)), int(m.group(3)) + 1)]
    m = re.fullmatch(r'([vas])(\d+)', neg)
    if m: return [(m.group(1), int(m.group(2)))]
    if neg == 'vcc': return [('s', 'vcc')]
    if neg == 'm0': return [('s', 'm0')]
    if neg == 'exec': return [('s', 'exec')]
    return []

TRANS = ('v_exp_f32', 'v_log_f32', 'v_rcp_f32', 'v_rsq_f32', 'v_sqrt_f32')

class Ins:
    def __init__(self, text):
        self.text = text
        t = text.split(';')[0].strip()
        self.label = t.endswith(':')
        self.op = t.split()[0] if t else ''
        rest = t[len(self.op):].strip()
        ops = [o.strip() for o in re.split(r',(?![^\[]*\])', rest)] if rest else []
        if ops:
            parts = ops[-1].split()
            ops[-1] = parts[0] if parts else ''
            self.mods = parts[1:]
        else: self.mods = []
        self.ops = ops
        op = self.op
        self.kind = 'other'
        self.w = []; self.r = []
        self.srcC = []; self.srcAB = []
        if op.startswith('v_mfma'):
            self.kind = 'mfma'
            self.w = regs_of(ops[0]); self.srcAB = regs_of(ops[1]) + regs_of(ops[2]); self.srcC = regs_of(ops[3])
            self.r = self.srcAB + self.srcC
            self.passes = 4 if '16x16x32' in op else 8
        elif op.startswith('v_'):
            self.kind = 'valu'
            if op.startswith('v_cmp'):
                self.w = regs_of(ops[0]); self.r = sum((regs_of(o) for o in ops[1:]), [])
            elif op.startswith('v_permlane') and 'swap' in op:
                self.w = regs_of(ops[0]) + regs_of(ops[1]); self.r = list(self.w)
            elif op.startswith('v_readfirstlane') or op.startswith('v_readlane'):
                self.w = regs_of(ops[0]); self.r = sum((regs_of(o) for o in ops[1:]), [])
            elif op.startswith('v_add_co') or op.startswith('v_addc_co'):
                self.w = regs_of(ops[0]) + regs_of(ops[1]); self.r = sum((regs_of(o) for o in ops[2:]), [])
            else:
                self.w = regs_of(ops[0]); self.r = sum((regs_of(o) for o in ops[1:]), [])
                if op.startswith('v_fmac') or op.startswith('v_pk_fmac'): self.r += self.w
                if op.startswith('v_cndmask') and len(ops) == 3: self.r += [('s', 'vcc')]
        elif op.startswith('ds_'):
            self.kind = 'ds'
            if op.startswith('ds_read') or op.startswith('ds_bpermute') or op.startswith('ds_swizzle'):
                self.w = regs_of(ops[0]); self.r = sum((regs_of(o) for o in ops[1:]), [])
            else:
                self.r = sum((regs_of(o) for o in ops), [])
        elif op.startswith('buffer_') or op.startswith('global_'):
            self.kind = 'vmem'
            self.lds = 'lds' in self.mods
            if op in ('buffer_inv', 'buffer_wbl2'):
                pass
            elif 'load' in op and not self.lds:
                self.w = regs_of(ops[0]); self.r = sum((regs_of(o) for o in ops[1:]), [])
            elif 'atomic' in op and 'sc0' in self.mods:
                self.w = regs_of(ops[0]); self.r = sum((regs_of(o) for o in ops[1:]), [])
            else:
                self.r = sum((regs_of(o) for o in ops), [])
            if self.lds: self.r += [('s', 'm0')]
            self.wide_store = ('store' in op and ('x4' in op or 'x3' in op))
            if self.wide_store:
                self.sdata = regs_of(ops[0]) if op.startswith('buffer_') else regs_of(ops[1])
        elif op.startswith('s_'):
            self.kind = 'salu'
            if op.startswith(('s_cmp', 's_cbranch', 's_branch', 's_waitcnt', 's_barrier', 's_nop', 's_endpgm', 's_sleep', 's_setprio', 's_bitcmp')):
                self.r = sum((regs_of(o) for o in ops), [])
            else:
                self.w = regs_of(ops[0]) if ops else []; self.r = sum((regs_of(o) for o in ops[1:]), [])
    def states(self):
        if self.label or not self.op: return 0
        if self.op == 's_nop': return int(self.ops[0], 0) + 1
        return 1

def required(prod, cons):
    need = 0
    pw = set(prod.w); cr = set(cons.r); cw = set(cons.w)
    if prod.kind == 'valu':
        vw = {x for x in pw if x[0] in 'va'}
        sw = {x for x in pw if x[0] == 's'}
        if cons.kind == 'mfma' and vw & cr: need = max(need, 2)
        if cons.kind == 'valu':
            if cons.op.startswith('v_permlane') and vw & cr: need = max(need, 2)
            if ('dpp' in cons.op or any(m.startswith(('row_', 'quad_perm', 'wave_')) for m in cons.mods)) and vw & cr: need = max(need, 2)
            if cons.op.startswith(('v_readfirstlane', 'v_readlane')) and vw & cr: need = max(need, 1)
            if prod.op.startswith(TRANS) and not cons.op.startswith(TRANS) and vw & cr: need = max(need, 1)
            if sw & cr: need = max(need, 2)
            if cons.op.startswith(('v_readlane', 'v_writelane')) and sw & cr: need = max(need, 4)
        if cons.kind == 'vmem' and sw & cr: need = max(need, 5)
        if cons.kind == 'salu' and sw & cr: need = max(need, 1)
        if ('s', 'exec') in pw and cons.kind == 'mfma': need = max(need, 4)
    if prod.kind == 'salu':
        if ('s', 'm0') in pw and cons.kind == 'vmem' and getattr(cons, 'lds', False): need = max(need, 1)
    if prod.kind == 'mfma':
        p = prod.passes
        big = {4: 8, 8: 12}[p]
        if cons.kind == 'mfma':
            if pw & set(cons.srcAB): need = max(need, big)
            if pw & set(cons.srcC):
                if not (cons.srcC == prod.w and cons.passes == p): need = max(need, {4: 6, 8: 10}[p])
            elif pw & cw: need = max(need, big)
        elif cons.kind in ('valu', 'ds', 'vmem'):
            if pw & (cr | cw): need = max(need, big)
        if cons.kind == 'valu' and set(prod.srcC) & cw: need = max(need, {4: 3, 8: 7}[p])
    if prod.kind == 'vmem' and getattr(prod, 'wide_store', False):
        if set(prod.sdata) & cw: need = max(need, 2 if cons.kind == 'valu' else 1)
    if prod.kind == 'ds' and prod.op.startswith('ds_write') and cons.kind == 'valu':
        pass
    return need

class Gen:
    def __init__(self):
        self.ins = []
        self.vmq = []
        self.lgq = []
        self.maxvm = 0
        self.cyc = 0
        self.bgq = []
        self.last_bg = -10**9
        self.bg_on = False
        self._in_bg = False
    def cost(self, i):
        if i.kind == 'mfma': return 4 * i.passes
        if i.kind == 'valu': return 8 if i.op.startswith(TRANS) else 4
        if i.op == 's_barrier': return 40
        if i.kind in ('ds', 'vmem', 'salu'): return 2 if self._prev_mfma else 4
        return 0
    _prev_mfma = False
    def e(self, text):
        for line in text.split('\n'):
            line = line.strip()
            if not line: continue
            i = Ins(line)
            self.ins.append(i)
            self.cyc += self.cost(i)
            if i.kind in ('mfma', 'valu'): self._prev_mfma = (i.kind == 'mfma')
            if self.bg_on and not self._in_bg and i.kind in ('mfma', 'valu') and not i.op.startswith(('v_cmp', 'v_readfirst')):
                self.try_bg()
    def bg(self, pre, vmtext, tag, gap=64):
        self.bgq.append((pre, vmtext, tag, gap))
    def _emit_bg(self):
        pre, vmtext, tag, gap = self.bgq.pop(0)
        self._in_bg = True
        if pre: self.e(pre)
        self.vm(vmtext, tag)
        self._in_bg = False
        self.last_bg = self.cyc
    def try_bg(self):
        if self.bgq and self.cyc - self.last_bg >= self.bgq[0][3]:
            self._emit_bg()
    def flush_bg(self, tags=None):
        if tags is None: n = len(self.bgq)
        else:
            n = 0
            for i, it in enumerate(self.bgq):
                if it[2] in tags: n = i + 1
        for _ in range(n): self._emit_bg()
    def c(self, text):
        i = Ins(''); i.text = '; ' + text; self.ins.append(i)
    def vm(self, text, tag):
        self.e(text); self.vmq.append(tag); self.maxvm = max(self.maxvm, len(self.vmq))
        assert len(self.vmq) <= 63, "too many outstanding vmem"
    def ds(self, text, tag):
        self.e(text); self.lgq.append(tag)
    def _n(self, q, tags):
        idx = -1
        for i, t in enumerate(q):
            if t in tags: idx = i
        return idx
    def wait(self, vm=None, lg=None, extra=''):
        parts = []
        if vm is not None:
            if vm == 'all':
                self.flush_bg(); idx = len(self.vmq) - 1
            else:
                tags = vm if isinstance(vm, (list, set)) else [vm]
                self.flush_bg(tags)
                idx = self._n(self.vmq, tags)
            if idx >= 0:
                n = len(self.vmq) - 1 - idx
                parts.append(f'vmcnt({n})'); self.vmq = self.vmq[idx + 1:]
        if lg is not None:
            if lg == 'all': idx = len(self.lgq) - 1
            else:
                tags = lg if isinstance(lg, (list, set)) else [lg]
                idx = self._n(self.lgq, tags)
            if idx >= 0:
                n = len(self.lgq) - 1 - idx
                n = min(n, 15)
                parts.append(f'lgkmcnt({n})'); self.lgq = self.lgq[len(self.lgq) - n:] if n else []
        if parts: self.e('s_waitcnt ' + ' '.join(parts))
    def finalize(self):
        out = []
        WIN = 24
        nn = 0
        for ins in self.ins:
            if ins.op and not ins.label:
                need = 0
                dist = 0
                for prev in reversed(out):
                    if dist >= WIN: break
                    if prev.op and not prev.label:
                        r = required(prev, ins)
                        if r > dist: need = max(need, r - dist)
                    dist += prev.states()
                while need > 0:
                    k = min(need, 16)
                    out.append(Ins(f's_nop {k-1}')); need -= k; nn += 1
            out.append(ins)
        self.nops = nn
        return '\n'.join(('' if i.label else '    ') + i.text for i in out) + '\n'
```

```python
import sys, math, struct
from gen_core import Gen
from asmlib import *

SLOT = 16384
SCR = 7 * SLOT
RING = [6, 4, 5, 0, 1, 2, 3]
LDS_BYTES = 163840
C_SCALE = math.log2(math.e) / math.sqrt(128.0)
def f2u(x): return struct.unpack('<I', struct.pack('<f', x))[0]

S_X, S_K, S_V, S_WQ, S_WO, S_OUT, S_WS, S_DBG = 8, 12, 16, 20, 24, 28, 32, 36
S_W, S_QH, S_KH, S_BR, S_B, S_H0 = 40, 41, 42, 43, 44, 45
S_KVOFF = 46
S_FLAG = 47
S_T0, S_T1, S_T2, S_T3 = 48, 49, 50, 51
S_C = 52; S_ROT = 53; S_WQOFF, S_XOFF = 54, 55
S_OB, S_MH, S_NT = 56, 57, 58
S_M0W4, S_M0W8, S_M0W3 = 59, 60, 61
S_OST = 62
S_POLL = 63
S_TS, S_TSB = 64, 66
S_BG0, S_BG1 = 68, 69
S_CNT = 70
S_WOH = 72
S_OH = 76
S_CODE = 92

def srd(g, s, lo, hi, size):
    g.e(f"s_mov_b32 s{s}, s{lo}\ns_mov_b32 s{s+1}, s{hi}\ns_mov_b32 s{s+2}, {size}\ns_mov_b32 s{s+3}, 0x20000")
def vr(a, n=4): return f"v[{a}:{a+n-1}]"
def ar(a, n=4): return f"a[{a}:{a+n-1}]"

class K:
    def __init__(self, opts):
        self.g = Gen(); self.o = opts; self.nstamp = 0
    def opt(self, k, d): return type(d)(self.o.get(k, d))

    VDK = 240; VDV = 244; VK0 = 246; VV0 = 247; VLANE16 = 248
    VDO = 240; VO0 = 246
    VM = 232; VL = 235; VST = 238; VFA = 249; VFB = 252
    KF = 192; VKC = 224
    VPOLL = 239

    def prologue(self, endlabel):
        g = self.g
        g.e(f"s_cmp_ge_u32 s2, 256\ns_cbranch_scc1 {endlabel}")
        if self.o.get('scramble'):
            g.e("s_lshr_b32 s3, s2, 5\ns_and_b32 s6, s2, 31\ns_lshl_b32 s6, s6, 3\ns_or_b32 s2, s6, s3")
        g.e("s_and_b32 s3, s2, 7          ; xcd")
        g.e(f"s_lshr_b32 s{S_BR}, s3, 2")
        g.e(f"s_mul_i32 s4, s{S_BR}, 40")
        g.e("s_add_u32 s4, s0, s4\ns_addc_u32 s5, s1, 0")
        g.e("s_load_dwordx8 s[72:79], s[4:5], 0      ; x, k, v, wq")
        g.e("s_load_dwordx2 s[80:81], s[4:5], 32     ; wo")
        g.e("s_load_dwordx4 s[84:87], s[0:1], 80")
        g.e("s_load_dwordx2 s[88:89], s[0:1], 96     ; ws")
        if self.o.get('stamps'): g.e(f"s_memtime s[{S_TSB}:{S_TSB+1}]")
        g.e("v_lshrrev_b32 v1, 6, v0")
        g.e("v_and_b32 v0, 63, v0                    ; lane")
        g.e(f"v_readfirstlane_b32 s{S_W}, v1")
        g.e(f"v_lshlrev_b32 v{self.VLANE16}, 4, v0")
        g.e("s_lshr_b32 s6, s2, 3         ; idx")
        if not self.o.get('nocodepf'):
            g.e(f"s_getpc_b64 s[{S_CODE}:{S_CODE+1}]")
            g.e(f"s_and_b32 s{S_CODE}, s{S_CODE}, 0xffffff00")
            g.e(f"s_mov_b32 s{S_CODE+2}, CODE_BYTES\ns_mov_b32 s{S_CODE+3}, 0x20000")
            g.e(f"s_lshl_b32 s{S_T0}, s6, 11\ns_lshl_b32 s{S_T1}, s{S_W}, 10\ns_add_u32 s{S_T0}, s{S_T0}, s{S_T1}")
            g.e(f"s_lshr_b32 s{S_T1}, s{S_W}, 1\ns_lshl_b32 s{S_T1}, s{S_T1}, 20\ns_add_u32 s{S_T0}, s{S_T0}, s{S_T1}")
            g.e(f"v_add_u32 v8, s{S_T0}, v{self.VLANE16}")
            g.vm(f"buffer_load_dwordx4 v[192:195], v8, s[{S_CODE}:{S_CODE+3}], 0 offen", 'code')
        g.e("s_and_b32 s7, s3, 3          ; hq")
        g.e(f"s_lshr_b32 s{S_B}, s6, 2")
        g.e(f"s_and_b32 s{S_T0}, s6, 3     ; hp")
        g.e(f"s_lshl_b32 s{S_H0}, s7, 3")
        g.e(f"s_lshl_b32 s{S_T1}, s{S_T0}, 1")
        g.e(f"s_add_u32 s{S_H0}, s{S_H0}, s{S_T1}")
        g.e(f"s_add_u32 s{S_ROT}, s{S_B}, s{S_T1}\ns_and_b32 s{S_ROT}, s{S_ROT}, 7")
        g.e(f"s_lshl_b32 s{S_FLAG}, s{S_BR}, 3\ns_add_u32 s{S_FLAG}, s{S_FLAG}, s{S_B}\ns_lshl_b32 s{S_FLAG}, s{S_FLAG}, 2\ns_add_u32 s{S_FLAG}, s{S_FLAG}, s7\ns_lshl_b32 s{S_FLAG}, s{S_FLAG}, 2\ns_add_u32 s{S_FLAG}, s{S_FLAG}, s{S_T0}")
        g.e(f"s_lshr_b32 s{S_OB}, s6, 4\ns_lshl_b32 s{S_T1}, s7, 1\ns_add_u32 s{S_OB}, s{S_OB}, s{S_T1}")
        g.e(f"s_lshr_b32 s{S_MH}, s6, 3\ns_and_b32 s{S_MH}, s{S_MH}, 1\ns_and_b32 s{S_NT}, s6, 7")
        g.e(f"s_and_b32 s{S_QH}, s{S_W}, 1\ns_lshr_b32 s{S_KH}, s{S_W}, 1")
        g.e(f"s_lshl_b32 s{S_M0W4}, s{S_W}, 12\ns_lshl_b32 s{S_M0W8}, s{S_W}, 13\ns_mul_i32 s{S_M0W3}, s{S_W}, 3072")
        g.e(f"s_add_u32 s{S_FLAG}, s{S_FLAG}, s{S_M0W4}")
        g.e(f"s_lshl_b32 s{S_POLL}, s{S_BR}, 3\ns_add_u32 s{S_POLL}, s{S_POLL}, s{S_OB}\ns_lshl_b32 s{S_POLL}, s{S_POLL}, 2\ns_add_u32 s{S_POLL}, s{S_POLL}, s{S_W}\ns_lshl_b32 s{S_POLL}, s{S_POLL}, 2")
        g.e(f"s_lshl_b32 s{S_KVOFF}, s{S_B}, 5\ns_add_u32 s{S_KVOFF}, s{S_KVOFF}, s{S_H0}\ns_lshl_b32 s{S_KVOFF}, s{S_KVOFF}, 17\ns_add_u32 s{S_KVOFF}, s{S_KVOFF}, s{S_M0W4}")
        g.e(f"s_lshl_b32 s{S_WQOFF}, s{S_W}, 17\ns_lshl_b32 s{S_T1}, s{S_H0}, 8\ns_add_u32 s{S_WQOFF}, s{S_WQOFF}, s{S_T1}")
        g.e(f"s_mul_i32 s{S_XOFF}, s{S_B}, 98304\ns_mul_i32 s{S_T1}, s{S_W}, 24576\ns_add_u32 s{S_XOFF}, s{S_XOFF}, s{S_T1}")
        g.e(f"s_lshl_b32 s{S_OST}, s{S_BR}, 3\ns_add_u32 s{S_OST}, s{S_OST}, s{S_B}\ns_lshl_b32 s{S_OST}, s{S_OST}, 5\ns_add_u32 s{S_OST}, s{S_OST}, s{S_H0}\ns_mul_i32 s{S_OST}, s{S_OST}, 24576")
        g.e(f"s_mul_i32 s{S_T1}, s{S_QH}, 12288\ns_add_u32 s{S_OST}, s{S_OST}, s{S_T1}\ns_lshl_b32 s{S_T1}, s{S_KH}, 11\ns_add_u32 s{S_OST}, s{S_OST}, s{S_T1}")
        g.e(f"s_mov_b32 s{S_C}, {f2u(C_SCALE):#x}")

    def srds(self):
        g = self.g
        g.e("s_waitcnt lgkmcnt(0)")
        srd(g, S_X, 72, 73, 786432); srd(g, S_WQ, 78, 79, 4194304)
        srd(g, S_K, 74, 75, 33554432); srd(g, S_V, 76, 77, 33554432)
    def srds2(self):
        g = self.g
        srd(g, S_WO, 80, 81, 4194304); srd(g, S_OUT, 84, 85, 1572864)
        srd(g, S_WS, 88, 89, 268435456); srd(g, S_DBG, 86, 87, 256)
        g.e(f"s_lshr_b32 s{S_T2}, s2, 6\ns_add_u32 s{S_T2}, s{S_T2}, s{S_NT}")
        g.e(f"s_lshl_b32 s{S_T0}, s{S_W}, 20\ns_lshl_b32 s{S_T1}, s{S_NT}, 7\ns_add_u32 s{S_T0}, s{S_T0}, s{S_T1}")
        g.e(f"s_lshl_b32 s{S_T3}, s{S_BR}, 3\ns_add_u32 s{S_T3}, s{S_T3}, s{S_OB}\ns_mul_i32 s{S_T3}, s{S_T3}, {32*24576}")
        g.e(f"s_mul_i32 s{S_T1}, s{S_MH}, 12288\ns_add_u32 s{S_T3}, s{S_T3}, s{S_T1}\ns_mul_i32 s{S_T1}, s{S_W}, {8*24576}\ns_add_u32 s{S_T3}, s{S_T3}, s{S_T1}      ; O base")
        for i in range(4):
            g.e(f"s_add_u32 s{S_T1}, s{S_T2}, {i}\ns_and_b32 s{S_T1}, s{S_T1}, 3")
            g.e(f"s_lshl_b32 s{S_WOH+i}, s{S_T1}, 18\ns_add_u32 s{S_WOH+i}, s{S_WOH+i}, s{S_T0}")
            g.e(f"s_mul_i32 s{S_OH+i}, s{S_T1}, 49152\ns_add_u32 s{S_OH+i}, s{S_OH+i}, s{S_T3}")

    def stamp(self, name):
        if not self.o.get('stamps'): return
        g = self.g; n = self.nstamp; self.nstamp += 1
        on = g.bg_on; g.bg_on = False
        g.c(f"stamp {n}: {name}")
        g.e(f"s_memtime s[{S_TS}:{S_TS+1}]")
        g.e("s_waitcnt lgkmcnt(0)"); g.lgq = []
        g.e(f"s_sub_u32 s{S_TS}, s{S_TS}, s{S_TSB}")
        g.e(f"v_writelane_b32 v255, s{S_TS}, {n}")
        g.bg_on = on
        print("stamp", n, name, file=sys.stderr)
    def stamp_flush(self):
        if not self.o.get('stamps'): return
        g = self.g
        g.e(f"s_lshl_b32 s{S_T0}, s2, 2\ns_add_u32 s{S_T0}, s{S_T0}, s{S_W}\ns_lshl_b32 s{S_T0}, s{S_T0}, 8\ns_add_u32 s{S_T0}, s{S_T0}, {64<<20}")
        g.e(f"v_lshrrev_b32 v254, 2, v{self.VLANE16}")
        g.vm(f"buffer_store_dword v255, v254, s[{S_WS}:{S_WS+3}], s{S_T0} offen", 'stamp')

    def setup_kv_addr(self):
        g = self.g
        g.c("K/V dma voffsets and read bases")
        g.e("v_lshrrev_b32 v2, 4, v0\nv_and_b32 v3, 15, v0")
        for i in range(4):
            g.e(f"v_add_u32 v4, {4*i}, v2\nv_xor_b32 v4, v4, v3\nv_lshlrev_b32 v4, 4, v4\nv_lshl_add_u32 v{self.VDK+i}, v2, 8, v4")
    def setup_kv_addr2(self, T):
        g = self.g
        L = self.VLANE16
        g.e(f"v_lshrrev_b32 v{T}, 8, v{L}\nv_bfe_u32 v{T+1}, v{L}, 4, 4")
        for i in range(2):
            g.e(f"v_add_u32 v{T+2}, {4*i}, v{T}\nv_lshlrev_b32 v{T+2}, 1, v{T+2}\nv_xor_b32 v{T+2}, v{T+2}, v{T+1}\nv_lshlrev_b32 v{T+2}, 4, v{T+2}\nv_lshl_add_u32 v{self.VDV+i}, v{T}, 8, v{T+2}")
        g.e(f"s_lshl_b32 s{S_T0}, s{S_KH}, 13")
        g.e(f"v_xor_b32 v{T+2}, v{T}, v{T+1}\nv_lshlrev_b32 v{T+2}, 4, v{T+2}\nv_lshl_add_u32 v{T+2}, v{T+1}, 8, v{T+2}\nv_add_u32 v{self.VK0}, s{S_T0}, v{T+2}")
        g.e(f"v_lshrrev_b32 v{T+2}, 6, v{L}\nv_and_b32 v{T+3}, 7, v{T+2}\nv_lshlrev_b32 v{T+3}, 5, v{T+3}\nv_lshl_add_u32 v{T+3}, v{T+2}, 8, v{T+3}")
        g.e(f"v_bfe_u32 v{T+4}, v{L}, 4, 2\nv_lshl_add_u32 v{T+3}, v{T+4}, 3, v{T+3}")
        g.e(f"v_add_u32 v{T+3}, s{S_T0}, v{T+3}\ns_lshl_b32 s{S_T1}, s{S_KH}, 7\nv_xor_b32 v{self.VV0}, s{S_T1}, v{T+3}")

    def kv_fill(self, f, gap=None):
        g = self.g
        gap = gap or self.opt('gap', 64)
        if f >= 32:
            self.op_wo(1, f - 32, gap); return
        unit, isv, j = f >> 4, (f >> 3) & 1, f & 7
        slot = RING[f % 7]
        sr = S_V if isv else S_K
        for i in range(4):
            pre = f"s_add_u32 m0, s{S_M0W4}, {slot*SLOT}   ; fill {f}\ns_add_u32 s{S_BG0}, s{S_KVOFF}, {unit*131072 + j*16384}" if i == 0 else None
            v = self.VDV + (i & 1) if isv else self.VDK + i
            g.bg(pre, f"buffer_load_dwordx4 v{v}, s[{sr}:{sr+3}], s{S_BG0} offen offset:{1024*i} {self.o.get('kvpol','nt').replace('none','')} lds", ('kv', f), gap)

    VDW = 96; VDX = 104; VW0 = 107; VX0 = 108; VWC = 110; VXC = 118; QB_ = 120; QA_ = 144
    def setup_q_addr(self):
        g = self.g
        g.c("Q-phase dma voffsets")
        g.e("v_lshrrev_b32 v2, 3, v0\nv_and_b32 v3, 7, v0\nv_lshrrev_b32 v5, 1, v2")
        for j in range(3):
            g.e(f"s_add_u32 s{S_T0}, s{S_W}, {j}\ns_and_b32 s{S_T0}, s{S_T0}, 1\ns_lshl_b32 s{S_T0}, s{S_T0}, 2")
            g.e(f"v_add_u32 v4, s{S_T0}, v5\nv_xor_b32 v4, v4, v3\nv_lshlrev_b32 v4, 4, v4\nv_lshl_add_u32 v4, v2, 10, v4")
            g.e(f"v_add_u32 v{self.VDX+j}, {j*7168}, v4")
        g.e("v_lshrrev_b32 v2, 5, v0\nv_and_b32 v3, 31, v0")
        for i in range(2):
            g.e(f"v_add_u32 v4, {2*i}, v2\nv_lshlrev_b32 v4, 1, v4\nv_xor_b32 v4, v4, v3\nv_lshlrev_b32 v4, 4, v4\nv_lshl_add_u32 v{6+i}, v2, 13, v4")
        for i in range(4):
            g.e(f"v_add_u32 v{self.VDW+i}, {i*15360}, v{6+(i&1)}")
        for i in range(4):
            g.e(f"v_xor_b32 v{self.VDW+4+i}, 128, v{self.VDW+i}")
    def setup_q_addr2(self):
        g = self.g
        g.e("v_lshrrev_b32 v2, 4, v0\nv_bfe_u32 v3, v0, 2, 2\nv_and_b32 v4, 3, v0")
        g.e("v_lshl_add_u32 v5, v2, 3, v3\nv_lshlrev_b32 v5, 9, v5")
        g.e("v_and_b32 v6, 1, v2\nv_lshl_add_u32 v6, v6, 2, v3\nv_lshl_add_u32 v5, v6, 5, v5\nv_lshl_add_u32 v5, v4, 3, v5")
        g.e(f"s_lshl_b32 s{S_T0}, s{S_KH}, 8\nv_add_u32 v{self.VW0}, s{S_T0}, v5")
        g.e("v_and_b32 v3, 15, v0\nv_lshrrev_b32 v4, 1, v3\nv_xor_b32 v4, v4, v2\nv_lshlrev_b32 v4, 4, v4\nv_lshl_add_u32 v4, v3, 7, v4")
        g.e(f"s_mul_i32 s{S_T0}, s{S_QH}, 6144\nv_add_u32 v{self.VX0}, s{S_T0}, v4")

    def q_fill(self, st):
        g = self.g
        buf = st % 3
        wb, xb = buf * 2 * SLOT, SCR + buf * SLOT
        pol = self.o.get('wpol', '')
        gap = self.opt('qgap', 64)
        for j in range(3):
            pre = None
            if j == 0:
                pre = (f"s_add_u32 s{S_BG1}, s{S_ROT}, {st}    ; q fill {st}\ns_and_b32 s{S_BG1}, s{S_BG1}, 7\ns_add_u32 m0, s{S_M0W3}, {xb}\n"
                       f"s_lshl_b32 s{S_BG0}, s{S_BG1}, 7\ns_add_u32 s{S_BG0}, s{S_BG0}, s{S_XOFF}")
            g.bg(pre, f"buffer_load_dwordx4 v{self.VDX+j}, s[{S_X}:{S_X+3}], s{S_BG0} offen offset:{1024*j} {pol} lds", ('q', st), gap)
        for grp in range(2):
            for i in range(4):
                pre = None
                if i == 0:
                    pre = f"s_add_u32 m0, s{S_M0W8}, {wb + grp*4096}\n"
                    pre += f"s_add_u32 s{S_BG0}, s{S_BG0}, {8*8192}" if grp else f"s_lshl_b32 s{S_BG0}, s{S_BG1}, 19\ns_add_u32 s{S_BG0}, s{S_BG0}, s{S_WQOFF}"
                g.bg(pre, f"buffer_load_dwordx4 v{self.VDW+4*grp+i}, s[{S_WQ}:{S_WQ+3}], s{S_BG0} offen offset:{1024*i} {pol} lds", ('q', st), gap)

    def q_step(self, st, after_barrier):
        g = self.g
        buf = st % 3
        wb, xb = buf * 2 * SLOT, SCR + buf * SLOT
        g.c(f"==== Q step {st}")
        g.e(f"v_add_u32 v{self.VWC}, {wb}, v{self.VW0}")
        g.e(f"v_add_u32 v{self.VXC}, {xb}, v{self.VX0}")
        for dt in range(1, 8): g.e(f"v_xor_b32 v{self.VWC+dt}, {32*dt}, v{self.VWC}")
        g.e(f"v_xor_b32 v{self.VXC+1}, 64, v{self.VXC}")
        g.wait(vm=('q', st))
        g.e("s_barrier")
        def rd_x(u):
            for qt in range(3):
                g.ds(f"ds_read_b128 {vr(self.QB_ + u*12 + qt*4)}, v{self.VXC+u} offset:{qt*2048}", ('x', u))
        def rd_w(u, dt):
            a = self.QA_ + (dt % 8) * 4
            g.ds(f"ds_read_b64_tr_b16 {vr(a,2)}, v{self.VWC+dt} offset:{u*16384}", ('w', u, dt))
            g.ds(f"ds_read_b64_tr_b16 {vr(a+2,2)}, v{self.VWC+dt} offset:{u*16384+2048}", ('w', u, dt))
        rd_x(0)
        for dt in range(4): rd_w(0, dt)
        after_barrier()
        g.try_bg()
        seq = [(u, dt) for u in range(2) for dt in range(8)]
        LOOK = 4
        for n, (u, dt) in enumerate(seq):
            g.wait(lg=[('x', u), ('w', u, dt)])
            a = self.QA_ + dt * 4
            for qt in range(3):
                acc = (dt * 3 + qt) * 4
                csrc = '0' if (st == 0 and u == 0) else vr(acc)
                g.e(f"v_mfma_f32_16x16x32_bf16 {vr(acc)}, {vr(a)}, {vr(self.QB_ + u*12 + qt*4)}, {csrc}")
                if qt == 0:
                    if n == 2: rd_x(1)
                    if n + LOOK < 16: rd_w(*seq[n + LOOK])

    AQ = [96, 144]
    def q_exchange(self, after_barrier):
        g = self.g
        g.c("==== Q exchange")
        g.e(f"v_lshrrev_b32 v96, 8, v{self.VLANE16}\nv_bfe_u32 v97, v{self.VLANE16}, 4, 4")
        g.e("v_lshrrev_b32 v98, 1, v96\nv_xor_b32 v98, v98, v97\nv_lshlrev_b32 v98, 4, v98\nv_lshl_add_u32 v98, v97, 8, v98")
        g.e("v_and_b32 v99, 1, v96\nv_lshl_add_u32 v98, v99, 3, v98")
        g.e(f"s_mul_i32 s{S_T0}, s{S_QH}, 12288\ns_mul_i32 s{S_T1}, s{S_KH}, 24576\ns_add_u32 s{S_T1}, s{S_T1}, s{S_T0}\ns_add_u32 s{S_T1}, s{S_T1}, {SCR}")
        g.e(f"v_add_u32 v100, s{S_T1}, v98")
        for dt in range(1, 8): g.e(f"v_xor_b32 v{100+dt}, {32*dt}, v100")
        g.e("v_xor_b32 v98, v96, v97\nv_lshlrev_b32 v98, 4, v98\nv_lshl_add_u32 v98, v97, 8, v98")
        g.e(f"s_add_u32 s{S_T0}, s{S_T0}, {SCR}\nv_add_u32 v108, s{S_T0}, v98")
        for t in range(1, 4): g.e(f"v_xor_b32 v{108+t}, {64*t}, v108")
        g.e("s_barrier")
        after_barrier()
        for dt in range(8):
            for qt in range(3):
                acc = (dt * 3 + qt) * 4
                d = 112 + (dt * 3 + qt) * 2
                g.e(f"v_cvt_pk_bf16_f32 v{d}, v{acc}, v{acc+1}\nv_cvt_pk_bf16_f32 v{d+1}, v{acc+2}, v{acc+3}")
                g.ds(f"ds_write_b64 v{100+dt}, {vr(d,2)} offset:{qt*4096}", 'qw')
        self.setup_kv_addr2(0)
        g.wait(lg='all')
        g.e("s_barrier")
        for eta in range(2):
            for qt in range(3):
                for t in range(4):
                    g.ds(f"ds_read_b128 {ar(self.AQ[eta] + (qt*4+t)*4)}, v{108+t} offset:{eta*24576 + qt*4096}", ('qr', eta))

    def s_step(self, unit, j, after_barrier, extra_wait=None):
        g = self.g
        f = unit * 16 + j
        slot = RING[f % 7] * SLOT
        g.c(f"==== S{unit} step {j} (fill {f})")
        g.e(f"v_add_u32 v{self.VKC}, {slot}, v{self.VK0}")
        for t in range(1, 4): g.e(f"v_xor_b32 v{self.VKC+t}, {64*t}, v{self.VKC}")
        g.wait(vm=[('kv', f)] + (extra_wait or []), lg='all')
        g.e("s_barrier")
        for tau in range(2):
            for t in range(4):
                g.ds(f"ds_read_b128 {vr(self.KF + (tau*4+t)*4)}, v{self.VKC+t} offset:{tau*4096}", ('k', tau, t))
        after_barrier()
        g.try_bg()
        for tau in range(2):
            for t in range(4):
                g.wait(lg=('k', tau, t))
                for qt in range(3):
                    acc = (j * 3 + qt) * 8 + tau * 4
                    csrc = '0' if t == 0 else vr(acc)
                    g.e(f"v_mfma_f32_16x16x32_bf16 {vr(acc)}, {vr(self.KF + (tau*4+t)*4)}, {ar(self.AQ[unit] + (qt*4+t)*4)}, {csrc}")

    def softmax(self, unit, mid=None):
        g = self.g
        g.c(f"==== softmax {unit}")
        T = 192
        def sreg(j, qt, i): return (j * 3 + qt) * 8 + i
        for qt in range(3):
            regs = [sreg(j, qt, i) for j in range(8) for i in range(8)]
            g.e(f"v_max3_f32 v{T+qt*2}, v{regs[0]}, v{regs[1]}, v{regs[2]}")
            g.e(f"v_max3_f32 v{T+qt*2+1}, v{regs[3]}, v{regs[4]}, v{regs[5]}")
            rest = regs[6:]; k = 0
            while len(rest) >= 2:
                g.e(f"v_max3_f32 v{T+qt*2+k}, v{T+qt*2+k}, v{rest[0]}, v{rest[1]}"); rest = rest[2:]; k ^= 1
            g.e(f"v_max_f32 v{self.VM+qt}, v{T+qt*2}, v{T+qt*2+1}")
        def xreduce(base, op):
            for sw in ('v_permlane32_swap_b32', 'v_permlane16_swap_b32'):
                for qt in range(3): g.e(f"v_mov_b32 v{T+qt}, v{base+qt}")
                for qt in range(3): g.e(f"{sw} v{T+qt}, v{base+qt}")
                for qt in range(3): g.e(f"{op} v{base+qt}, v{T+qt}, v{base+qt}")
        xreduce(self.VM, 'v_max_f32')
        for qt in range(3): g.e(f"v_mul_f32 v{self.VM+qt}, s{S_C}, v{self.VM+qt}")
        SUM = T + 8
        pk = not self.o.get('nopk')
        MP = T + 16
        if pk:
            for qt in range(3): g.e(f"v_mov_b32 v{MP+2*qt}, v{self.VM+qt}")
        first = [True] * 3
        for j in range(8):
            if mid and j in mid: mid[j]()
            for qt in range(3):
                b = sreg(j, qt, 0)
                if pk:
                    for i in range(0, 8, 2):
                        g.e(f"v_pk_fma_f32 {vr(b+i,2)}, {vr(b+i,2)}, s[{S_C}:{S_C+1}], {vr(MP+2*qt,2)} op_sel_hi:[1,0,0] neg_lo:[0,0,1] neg_hi:[0,0,1]")
                else:
                    for i in range(8): g.e(f"v_fma_f32 v{b+i}, v{b+i}, s{S_C}, -v{self.VM+qt}")
                for i in range(8): g.e(f"v_exp_f32 v{b+i}, v{b+i}")
                s = SUM + 2 * qt
                for i in range(0, 8, 2):
                    if pk:
                        if first[qt] and i == 0:
                            g.e(f"v_pk_add_f32 {vr(s,2)}, {vr(b,2)}, {vr(b+2,2)}")
                        elif first[qt] and i == 2: pass
                        else: g.e(f"v_pk_add_f32 {vr(s,2)}, {vr(s,2)}, {vr(b+i,2)}")
                    else:
                        if first[qt] and i == 0: g.e(f"v_mov_b32 v{s}, v{b}\nv_mov_b32 v{s+1}, v{b+1}")
                        else: g.e(f"v_add_f32 v{s}, v{s}, v{b+i}\nv_add_f32 v{s+1}, v{s+1}, v{b+i+1}")
                first[qt] = False
                p = (j * 3 + qt) * 4
                for i in range(4): g.e(f"v_cvt_pk_bf16_f32 v{p+i}, v{b+2*i}, v{b+2*i+1}")
        for qt in range(3): g.e(f"v_add_f32 v{self.VL+qt}, v{SUM+qt*2}, v{SUM+qt*2+1}")
        xreduce(self.VL, 'v_add_f32')
        g.e(f"s_lshl_b32 s{S_T0}, s{S_W}, 11\ns_add_u32 s{S_T0}, s{S_T0}, {SCR}")
        g.e(f"v_add_u32 v{T}, s{S_T0}, v{self.VLANE16}")
        g.e(f"v_xor_b32 v{self.VST}, 4096, v{T}     ; partner (w^2)")
        g.ds(f"ds_write_b128 v{T}, {vr(self.VM)}", 'st')
        g.ds(f"ds_write_b64 v{T}, {vr(self.VM+4, 2)} offset:1024", 'st')

    def stats_combine_read(self):
        g = self.g
        g.ds(f"ds_read_b128 a[240:243], v{self.VST}", 'str')
        g.ds(f"ds_read_b64 a[244:245], v{self.VST} offset:1024", 'str')
    def stats_combine(self):
        g = self.g
        g.c("combine softmax stats with partner wave")
        g.wait(lg='str')
        A, B = self.VFA, self.VFB
        t0, t1 = 238, 239
        for qt in range(3):
            g.e(f"v_accvgpr_read_b32 v{t0}, a{240+qt}")
            g.e(f"v_accvgpr_read_b32 v{t1}, a{243+qt}")
            g.e(f"v_max_f32 v{A+qt}, v{t0}, v{self.VM+qt}")
            g.e(f"v_sub_f32 v{B+qt}, v{t0}, v{A+qt}")
            g.e(f"v_sub_f32 v{A+qt}, v{self.VM+qt}, v{A+qt}")
            g.e(f"v_exp_f32 v{B+qt}, v{B+qt}")
            g.e(f"v_exp_f32 v{A+qt}, v{A+qt}")
            g.e(f"v_mul_f32 v{t1}, v{t1}, v{B+qt}")
            g.e(f"v_fma_f32 v{t1}, v{self.VL+qt}, v{A+qt}, v{t1}")
            g.e(f"v_rcp_f32 v{t1}, v{t1}")
            g.e(f"v_mul_f32 v{A+qt}, v{A+qt}, v{t1}")
            g.e(f"v_mul_f32 v{B+qt}, v{B+qt}, v{t1}")

    OACC = 96
    def pv_step(self, unit, j, after_barrier):
        g = self.g
        f = unit * 16 + 8 + j
        slot = RING[f % 7] * SLOT
        g.c(f"==== PV{unit} step {j} (fill {f})")
        g.e(f"v_add_u32 v{self.VKC}, {slot}, v{self.VV0}")
        for d in range(1, 8): g.e(f"v_xor_b32 v{self.VKC+d}, {32*d}, v{self.VKC}")
        g.wait(vm=('kv', f), lg='all')
        g.e("s_barrier")
        def rd(d):
            a = self.KF + d * 4
            g.ds(f"ds_read_b64_tr_b16 {vr(a,2)}, v{self.VKC+d}", ('v', d))
            g.ds(f"ds_read_b64_tr_b16 {vr(a+2,2)}, v{self.VKC+d} offset:4096", ('v', d))
        for d in range(6): rd(d)
        if j == 0: self.stats_combine_read()
        after_barrier()
        g.try_bg()
        for d in range(8):
            g.wait(lg=('v', d))
            for qt in range(3):
                acc = self.OACC + (d * 3 + qt) * 4
                csrc = '0' if j == 0 else vr(acc)
                g.e(f"v_mfma_f32_16x16x32_bf16 {vr(acc)}, {vr(self.KF + d*4)}, {vr((j*3+qt)*4)}, {csrc}")
                if qt == 0 and d + 6 < 8: rd(d + 6)
        if j == 0: self.stats_combine()

    def o_exchange(self, unit, at_start, after_barrier):
        g = self.g
        g.c(f"==== O exchange + publish unit {unit}")
        T = 192
        g.e(f"s_mul_i32 s{S_T0}, s{S_W}, 12288\ns_add_u32 s{S_T0}, s{S_T0}, {SCR}")
        g.e(f"v_add_u32 v{T}, s{S_T0}, v{self.VLANE16}")
        g.e(f"s_xor_b32 s{S_T1}, s{S_W}, 2\ns_mul_i32 s{S_T1}, s{S_T1}, 12288\ns_add_u32 s{S_T1}, s{S_T1}, {SCR}")
        g.e(f"v_add_u32 v{T+1}, s{S_T1}, v{self.VLANE16}")
        at_start()
        for i in range(12):
            g.ds(f"ds_write_b128 v{T}, {vr(self.OACC + 48 + i*4)} offset:{i*1024}", 'ow')
            qt = i % 3
            for r in range(4):
                a = self.OACC + i * 4 + r
                g.e(f"v_mul_f32 v{a}, v{a}, v{self.VFA+qt}")
        g.wait(lg='all')
        g.e("s_barrier")
        order = [(2 * ks + h) * 3 + qt for ks in range(2) for qt in range(3) for h in range(2)]
        for i in order:
            g.ds(f"ds_read_b128 {vr(i*4)}, v{T+1} offset:{i*1024}", ('or', i))
        after_barrier()
        pol = self.o.get('opol', 'sc1')
        g.e(f"s_add_u32 s{S_T0}, s{S_OST}, {unit*24576}\ns_add_u32 s{S_T1}, s{S_T0}, 4096\ns_add_u32 s{S_T2}, s{S_T0}, 8192")
        for ks in range(2):
            for qt in range(3):
                dst = 48 + (ks * 3 + qt) * 4
                for h in range(2):
                    i = (2 * ks + h) * 3 + qt
                    g.wait(lg=('or', i))
                    for r in range(4):
                        a = self.OACC + i * 4 + r
                        g.e(f"v_fma_f32 v{a}, v{i*4+r}, v{self.VFB+qt}, v{a}")
                    a = self.OACC + i * 4
                    g.e(f"v_cvt_pk_bf16_f32 v{dst+2*h}, v{a}, v{a+1}\nv_cvt_pk_bf16_f32 v{dst+2*h+1}, v{a+2}, v{a+3}")
                g.vm(f"buffer_store_dwordx4 {vr(dst)}, v{self.VLANE16}, s[{S_WS}:{S_WS+3}], s{S_T0+qt} offen offset:{ks*1024} {pol}", ('ost', unit))

    def flag(self, r, t):
        g = self.g
        g.c(f"publish flag round {r}")
        g.e(f"v_lshl_add_u32 v{t}, v{self.VLANE16}, 4, s{S_FLAG}\nv_mov_b32 v{t+1}, {1 if r == 0 else 3}")
        g.vm(f"buffer_store_byte v{t+1}, v{t}, s[{S_DBG}:{S_DBG+3}], 0 offen sc1", ('flag', r))
    def poll_issue(self, t):
        g = self.g
        g.e(f"v_mov_b32 v{t}, s{S_POLL}")
        g.vm(f"buffer_load_dword v{self.VPOLL}, v{t}, s[{S_DBG}:{S_DBG+3}], 0 offen sc1", 'poll')
    def poll_check(self, r, t):
        g = self.g
        mask = 0x01010101 if r == 0 else 0x02020202
        on = g.bg_on; g.bg_on = False
        g.wait(vm='poll')
        g.e(f"s_mov_b32 s{S_CNT}, 0")
        g.e(f"L_poll{r}:")
        g.e(f"v_readfirstlane_b32 s{S_T0}, v{self.VPOLL}")
        g.e(f"s_and_b32 s{S_T0}, s{S_T0}, {mask:#x}\ns_cmp_eq_u32 s{S_T0}, {mask:#x}\ns_cbranch_scc1 L_polled{r}")
        g.e(f"s_add_u32 s{S_CNT}, s{S_CNT}, 1\ns_cmp_gt_u32 s{S_CNT}, 200000\ns_cbranch_scc1 L_polled{r}")
        g.e(f"s_sleep {self.opt('sleep', 2)}")
        g.e(f"v_mov_b32 v{t}, s{S_POLL}")
        g.e(f"buffer_load_dword v{self.VPOLL}, v{t}, s[{S_DBG}:{S_DBG+3}], 0 offen sc1")
        g.e("s_waitcnt vmcnt(0)")
        g.e(f"s_branch L_poll{r}")
        g.e(f"L_polled{r}:")
        g.bg_on = on

    OPACC = 192
    def setup_op_addr(self, T):
        g = self.g; L = self.VLANE16
        g.c("out-proj addresses")
        g.e(f"v_lshrrev_b32 v{T}, 7, v{L}\nv_bfe_u32 v{T+1}, v{L}, 4, 3\nv_and_b32 v{T+2}, 6, v{T}\nv_xor_b32 v{T+2}, v{T+2}, v{T+1}\nv_lshlrev_b32 v{T+2}, 4, v{T+2}\nv_lshl_add_u32 v{T+2}, v{T}, 10, v{T+2}")
        for j in range(4): g.e(f"v_add_u32 v{self.VDO+j}, {j*7168}, v{T+2}")
        g.e(f"v_lshrrev_b32 v{T}, 6, v{L}\nv_bfe_u32 v{T+1}, v{L}, 7, 2\nv_lshlrev_b32 v{T+1}, 5, v{T+1}\nv_lshl_add_u32 v{T+1}, v{T}, 7, v{T+1}\nv_bfe_u32 v{T+2}, v{L}, 4, 2")
        g.e(f"v_lshl_add_u32 v{T+1}, v{T+2}, 3, v{T+1}\nv_add_u32 v{self.VO0}, s{S_M0W4}, v{T+1}")
    def op_loc(self, r, n):
        if r == 0: return RING[(27 + n % 4) % 7]
        loc = [RING[(32 + i) % 7] for i in range(7)] + [7, 8, 9]
        return loc[n % 10]
    def op_wo(self, r, n, gap):
        g = self.g
        pol = self.o.get('wopol', '')
        for j in range(4):
            pre = f"s_add_u32 m0, s{S_M0W4}, {self.op_loc(r, n)*SLOT}   ; wo r{r} n{n}\ns_add_u32 s{S_BG0}, s{S_WOH + (n>>2)}, {r*131072 + (n&3)*32768}" if j == 0 else None
            g.bg(pre, f"buffer_load_dwordx4 v{self.VDO+j}, s[{S_WO}:{S_WO+3}], s{S_BG0} offen offset:{1024*j} {pol} lds", ('wo', r, n), gap)
    NB = 6
    def op_o(self, r, n, gap):
        g = self.g
        for qt in range(3):
            pre = f"s_add_u32 s{S_BG1}, s{S_OH + (n>>2)}, {r*24576 + qt*4096}"
            g.bg(pre, f"buffer_load_dwordx4 {ar((n % self.NB)*12 + qt*4)}, v{self.VLANE16}, s[{S_WS}:{S_WS+3}], s{S_BG1} offen offset:{(n&3)*1024} sc1", ('ob', r, n), gap)
    def op_step(self, r, n, release):
        g = self.g
        g.c(f"==== OP round {r} step {n}")
        VOC = self.VKC + (n & 1) * 4
        AF = self.KF + (n & 1) * 16
        g.e(f"v_add_u32 v{VOC}, {self.op_loc(r, n)*SLOT}, v{self.VO0}")
        for nu in range(1, 4): g.e(f"v_xor_b32 v{VOC+nu}, {32*nu}, v{VOC}")
        g.wait(vm=('wo', r, n))
        for nu in range(4):
            a = AF + nu * 4
            g.ds(f"ds_read_b64_tr_b16 {vr(a,2)}, v{VOC+nu}", ('a', n, nu))
            g.ds(f"ds_read_b64_tr_b16 {vr(a+2,2)}, v{VOC+nu} offset:2048", ('a', n, nu))
        release()
        g.try_bg()
        g.wait(vm=('ob', r, n))
        for nu in range(4):
            g.wait(lg=('a', n, nu))
            for qt in range(3):
                acc = self.OPACC + (nu * 3 + qt) * 4
                csrc = '0' if (r == 0 and n == 0) else ar(acc)
                g.e(f"v_mfma_f32_16x16x32_bf16 {ar(acc)}, {vr(AF + nu*4)}, {ar((n % self.NB)*12 + qt*4)}, {csrc}")

    def final(self):
        g = self.g; L16 = self.VLANE16
        g.c("==== final reduce")
        g.e(f"s_mul_i32 s{S_T0}, s{S_W}, 12288\ns_add_u32 s{S_T0}, s{S_T0}, {SCR}\nv_add_u32 v100, s{S_T0}, v{L16}")
        g.e(f"s_add_u32 s{S_T0}, s{S_M0W3}, {SCR}\nv_add_u32 v103, s{S_T0}, v{L16}")
        g.e(f"v_bfe_u32 v101, v{L16}, 4, 4\nv_lshrrev_b32 v102, 8, v{L16}\nv_lshlrev_b32 v101, 11, v101\nv_lshl_add_u32 v101, v102, 3, v101")
        g.e(f"s_mul_i32 s{S_T0}, s{S_OB}, {96*2048}\ns_mul_i32 s{S_T1}, s{S_MH}, {48*2048}\ns_add_u32 s{S_T0}, s{S_T0}, s{S_T1}")
        g.e(f"s_lshl_b32 s{S_T1}, s{S_BR}, 10\ns_add_u32 s{S_T0}, s{S_T0}, s{S_T1}\ns_lshl_b32 s{S_T1}, s{S_NT}, 7\ns_add_u32 s{S_T0}, s{S_T0}, s{S_T1}\ns_lshl_b32 s{S_T1}, s{S_W}, 5\ns_add_u32 s{S_T0}, s{S_T0}, s{S_T1}")
        g.e("s_barrier")
        for i in range(12):
            g.ds(f"ds_write_b128 v100, {ar(self.OPACC + i*4)} offset:{i*1024}", 'fw')
        g.wait(lg='all')
        g.e("s_barrier")
        for qt in range(3):
            for src in range(4):
                g.ds(f"ds_read_b128 {vr((src*3+qt)*4)}, v103 offset:{src*12288 + qt*1024}", ('fr', qt))
        for qt in range(3):
            g.wait(lg=('fr', qt))
            for r in range(4):
                a = qt * 4 + r
                g.e(f"v_add_f32 v{a}, v{a}, v{12+a}\nv_add_f32 v{24+a}, v{24+a}, v{36+a}\nv_add_f32 v{a}, v{a}, v{24+a}")
            g.e(f"v_cvt_pk_bf16_f32 v{48+qt*2}, v{qt*4}, v{qt*4+1}\nv_cvt_pk_bf16_f32 v{49+qt*2}, v{qt*4+2}, v{qt*4+3}")
            if qt: g.e(f"s_add_u32 s{S_T0}, s{S_T0}, {16*2048}")
            g.vm(f"buffer_store_dwordx2 {vr(48+qt*2,2)}, v101, s[{S_OUT}:{S_OUT+3}], s{S_T0} offen", 'out')

def build(opts):
    k = K(opts); g = k.g
    smgap = k.opt('smgap', 200)
    opgap = k.opt('opgap', 16)
    rel = {('q', 6): [1, 2], ('q', 7): [3, 4], 'qx': [5, 6],
           ('s', 0, 4): [7], ('s', 0, 5): [8], ('s', 0, 6): [9], ('s', 0, 7): [10],
           ('pv', 0, 1): [14], ('pv', 0, 3): [15], ('pv', 0, 5): [16], ('pv', 0, 6): [17], ('pv', 0, 7): [18],
           ('ox', 0): [19, 20],
           ('s', 1, 1): [21], ('s', 1, 3): [22], ('s', 1, 4): [23], ('s', 1, 5): [24], ('s', 1, 6): [25], ('s', 1, 7): [26],
           ('pv', 1, 3): [30], ('pv', 1, 4): [31], ('pv', 1, 5): [32], ('pv', 1, 6): [33], ('pv', 1, 7): [34],
           ('ox', 1): [35, 36, 37], ('oxb', 1): [38]}
    def R(key, gap=None):
        def fn():
            for f in rel.get(key, []): k.kv_fill(f, gap)
        return fn
    k.prologue("L_end")
    k.setup_q_addr()
    k.srds()
    k.q_fill(0); g.flush_bg()
    k.setup_kv_addr()
    k.kv_fill(0); k.q_fill(1); g.flush_bg()
    k.setup_q_addr2()
    k.srds2()
    k.stamp("issued first")
    g.bg_on = True
    for st in range(8):
        def ab(st=st):
            if st + 2 < 8: k.q_fill(st + 2)
            R(('q', st))()
        k.q_step(st, ab)
        if st in (0, 7): k.stamp(f"q step {st} done")
    k.q_exchange(R('qx'))
    k.stamp("q exch")
    for j in range(8): k.s_step(0, j, R(('s', 0, j)))
    k.stamp("S0")
    for f in (11, 12, 13): k.kv_fill(f, smgap)
    k.softmax(0)
    k.stamp("SM0")
    for j in range(8): k.pv_step(0, j, R(('pv', 0, j)))
    k.stamp("PV0")
    k.o_exchange(0, R(('ox', 0), 128), lambda: None)
    k.stamp("OX0")
    FJ = k.opt('flagstep', 3)
    for j in range(8):
        def ab(j=j):
            if j == FJ: k.flag(0, 232)
            R(('s', 1, j))()
        k.s_step(1, j, ab, extra_wait=[('ost', 0)] if j == FJ else None)
    k.stamp("S1")
    g.flush_bg()
    k.setup_op_addr(232)
    def mid_poll(): k.poll_issue(231)
    def mid_wo():
        for n in range(3): k.op_wo(0, n, 128)
    k.softmax(1, mid={3: mid_poll, 5: mid_wo})
    k.stamp("SM1")
    g.wait(lg='all')
    g.e("s_barrier")
    k.poll_check(0, 231)
    LA0 = 3
    for n in range(LA0): k.op_o(0, n, opgap)
    g.flush_bg()
    for n in range(16):
        def rl(n=n):
            if n + LA0 < 16:
                k.op_wo(0, n + LA0, opgap); k.op_o(0, n + LA0, opgap)
            else:
                k.kv_fill(27 + (n + LA0 - 16), opgap)
        k.op_step(0, n, rl)
    k.stamp("OP1")
    for j in range(8): k.pv_step(1, j, R(('pv', 1, j)))
    k.stamp("PV1")
    k.o_exchange(1, R(('ox', 1), 96), R(('oxb', 1), 96))
    k.stamp("OX1")
    g.wait(vm=('ost', 1))
    g.e("s_barrier")
    k.flag(1, 232)
    g.flush_bg()
    for n in (7, 8, 9): k.op_wo(1, n, 64)
    g.flush_bg()
    k.stamp("flagged")
    k.poll_issue(231)
    k.poll_check(1, 231)
    k.stamp("polled")
    LA1 = k.opt('la1', 4)
    for n in range(LA1): k.op_o(1, n, opgap)
    g.flush_bg()
    for n in range(16):
        def rl(n=n):
            if n + LA1 < 16: k.op_o(1, n + LA1, opgap)
            if n >= 1 and n + 9 < 16: k.op_wo(1, n + 9, opgap)
        k.op_step(1, n, rl)
    k.stamp("OP2")
    g.bg_on = False
    k.final()
    k.stamp("end")
    k.stamp_flush()
    g.e("s_waitcnt vmcnt(0)")
    g.e("L_end:\ns_endpgm")
    t = g.finalize()
    print("nops", g.nops, "maxvm", g.maxvm, "ninstr", len(g.ins), "est cycles", g.cyc, file=sys.stderr)
    s = header([f"; @launch grid=(256,1,1) block=(256,1,1) lds={LDS_BYTES}"])
    s += kstart(NAME) + t
    s += kdesc(NAME, 512, 102, 256)
    return s

if __name__ == "__main__":
    out = sys.argv[1]
    opts = {}
    for a in sys.argv[2:]:
        kk, _, vv = a.partition('=')
        opts[kk] = vv if vv else True
    txt = build(opts)
    import subprocess, re
    open(out, "w").write(txt.replace("CODE_BYTES", "0x12345"))
    subprocess.check_call(["clang", "-x", "assembler", "-target", "amdgcn-amd-amdhsa", "-mcpu=gfx950", "-c", out, "-o", "gen_tmp.o"])
    h = subprocess.check_output(["llvm-objdump", "-h", "gen_tmp.o"], text=True)
    size = int(re.search(r"\.text\s+([0-9a-f]+)", h).group(1), 16)
    print("code bytes", size, file=sys.stderr)
    open(out, "w").write(txt.replace("CODE_BYTES", str(size)))
```

```python
import sys, math, struct
from gen_core import Gen
from asmlib import *

SLOT = 16384
SCR = 7 * SLOT
RING = [6, 4, 5, 0, 1, 2, 3]
LDS_BYTES = 163840
C_SCALE = math.log2(math.e) / math.sqrt(128.0)
def f2u(x): return struct.unpack('<I', struct.pack('<f', x))[0]

S_X, S_K, S_V, S_WQ, S_WO, S_OUT, S_WS, S_DBG = 8, 12, 16, 20, 24, 28, 32, 36
S_W, S_QH, S_KH, S_BR, S_B, S_H0 = 40, 41, 42, 43, 44, 45
S_KVOFF = 46
S_FLAG = 47
S_T0, S_T1, S_T2, S_T3 = 48, 49, 50, 51
S_C = 52; S_ROT = 53; S_WQOFF, S_XOFF = 54, 55
S_OB, S_MH, S_NT = 56, 57, 58
S_M0W4, S_M0W8, S_M0W3 = 59, 60, 61
S_OST = 62
S_POLL = 63
S_TS, S_TSB = 64, 66
S_BG0, S_BG1 = 68, 69
S_CNT = 70
S_WOH = 72
S_OH = 76
S_CODE = 92

def srd(g, s, lo, hi, size):
    g.e(f"s_mov_b32 s{s}, s{lo}\ns_mov_b32 s{s+1}, s{hi}\ns_mov_b32 s{s+2}, {size}\ns_mov_b32 s{s+3}, 0x20000")
def vr(a, n=4): return f"v[{a}:{a+n-1}]"
def ar(a, n=4): return f"a[{a}:{a+n-1}]"

class K:
    def __init__(self, opts):
        self.g = Gen(); self.o = opts; self.nstamp = 0
    def opt(self, k, d): return type(d)(self.o.get(k, d))

    VDK = 240; VDV = 244; VK0 = 246; VV0 = 247; VLANE16 = 248
    VDO = 240; VO0 = 246
    VM = 232; VL = 235; VST = 238; VFA = 249; VFB = 252
    KF = 192; VKC = 224
    VPOLL = 239

    def prologue(self, endlabel):
        g = self.g
        g.e(f"s_cmp_ge_u32 s2, 256\ns_cbranch_scc1 {endlabel}")
        if self.o.get('scramble'):
            g.e("s_lshr_b32 s3, s2, 5\ns_and_b32 s6, s2, 31\ns_lshl_b32 s6, s6, 3\ns_or_b32 s2, s6, s3")
        g.e("s_and_b32 s3, s2, 7          ; xcd")
        g.e(f"s_lshr_b32 s{S_BR}, s3, 2")
        g.e(f"s_mul_i32 s4, s{S_BR}, 40")
        g.e("s_add_u32 s4, s0, s4\ns_addc_u32 s5, s1, 0")
        g.e("s_load_dwordx8 s[72:79], s[4:5], 0      ; x, k, v, wq")
        g.e("s_load_dwordx2 s[80:81], s[4:5], 32     ; wo")
        g.e("s_load_dwordx4 s[84:87], s[0:1], 80")
        g.e("s_load_dwordx2 s[88:89], s[0:1], 96     ; ws")
        if self.o.get('stamps'): g.e(f"s_memtime s[{S_TSB}:{S_TSB+1}]")
        g.e("v_lshrrev_b32 v1, 6, v0")
        g.e("v_and_b32 v0, 63, v0                    ; lane")
        g.e(f"v_readfirstlane_b32 s{S_W}, v1")
        g.e(f"v_lshlrev_b32 v{self.VLANE16}, 4, v0")
        g.e("s_lshr_b32 s6, s2, 3         ; idx")
        if not self.o.get('nocodepf'):
            g.e(f"s_getpc_b64 s[{S_CODE}:{S_CODE+1}]")
            g.e(f"s_and_b32 s{S_CODE}, s{S_CODE}, 0xffffff00")
            g.e(f"s_mov_b32 s{S_CODE+2}, CODE_BYTES\ns_mov_b32 s{S_CODE+3}, 0x20000")
            g.e(f"s_lshl_b32 s{S_T0}, s6, 11\ns_lshl_b32 s{S_T1}, s{S_W}, 10\ns_add_u32 s{S_T0}, s{S_T0}, s{S_T1}")
            g.e(f"s_lshr_b32 s{S_T1}, s{S_W}, 1\ns_lshl_b32 s{S_T1}, s{S_T1}, 20\ns_add_u32 s{S_T0}, s{S_T0}, s{S_T1}")
            g.e(f"v_add_u32 v8, s{S_T0}, v{self.VLANE16}")
            g.vm(f"buffer_load_dwordx4 v[192:195], v8, s[{S_CODE}:{S_CODE+3}], 0 offen", 'code')
        g.e("s_and_b32 s7, s3, 3          ; hq")
        g.e(f"s_lshr_b32 s{S_B}, s6, 2")
        g.e(f"s_and_b32 s{S_T0}, s6, 3     ; hp")
        g.e(f"s_lshl_b32 s{S_H0}, s7, 3")
        g.e(f"s_lshl_b32 s{S_T1}, s{S_T0}, 1")
        g.e(f"s_add_u32 s{S_H0}, s{S_H0}, s{S_T1}")
        g.e(f"s_add_u32 s{S_ROT}, s{S_B}, s{S_T1}\ns_and_b32 s{S_ROT}, s{S_ROT}, 7")
        g.e(f"s_lshl_b32 s{S_FLAG}, s{S_BR}, 3\ns_add_u32 s{S_FLAG}, s{S_FLAG}, s{S_B}\ns_lshl_b32 s{S_FLAG}, s{S_FLAG}, 2\ns_add_u32 s{S_FLAG}, s{S_FLAG}, s7\ns_lshl_b32 s{S_FLAG}, s{S_FLAG}, 2\ns_add_u32 s{S_FLAG}, s{S_FLAG}, s{S_T0}")
        g.e(f"s_lshr_b32 s{S_OB}, s6, 4\ns_lshl_b32 s{S_T1}, s7, 1\ns_add_u32 s{S_OB}, s{S_OB}, s{S_T1}")
        g.e(f"s_lshr_b32 s{S_MH}, s6, 3\ns_and_b32 s{S_MH}, s{S_MH}, 1\ns_and_b32 s{S_NT}, s6, 7")
        g.e(f"s_and_b32 s{S_QH}, s{S_W}, 1\ns_lshr_b32 s{S_KH}, s{S_W}, 1")
        g.e(f"s_lshl_b32 s{S_M0W4}, s{S_W}, 12\ns_lshl_b32 s{S_M0W8}, s{S_W}, 13\ns_mul_i32 s{S_M0W3}, s{S_W}, 3072")
        g.e(f"s_add_u32 s{S_FLAG}, s{S_FLAG}, s{S_M0W4}")
        g.e(f"s_lshl_b32 s{S_POLL}, s{S_BR}, 3\ns_add_u32 s{S_POLL}, s{S_POLL}, s{S_OB}\ns_lshl_b32 s{S_POLL}, s{S_POLL}, 2\ns_add_u32 s{S_POLL}, s{S_POLL}, s{S_W}\ns_lshl_b32 s{S_POLL}, s{S_POLL}, 2")
        g.e(f"s_lshl_b32 s{S_KVOFF}, s{S_B}, 5\ns_add_u32 s{S_KVOFF}, s{S_KVOFF}, s{S_H0}\ns_lshl_b32 s{S_KVOFF}, s{S_KVOFF}, 17\ns_add_u32 s{S_KVOFF}, s{S_KVOFF}, s{S_M0W4}")
        g.e(f"s_lshl_b32 s{S_WQOFF}, s{S_W}, 17\ns_lshl_b32 s{S_T1}, s{S_H0}, 8\ns_add_u32 s{S_WQOFF}, s{S_WQOFF}, s{S_T1}")
        g.e(f"s_mul_i32 s{S_XOFF}, s{S_B}, 98304\ns_mul_i32 s{S_T1}, s{S_W}, 24576\ns_add_u32 s{S_XOFF}, s{S_XOFF}, s{S_T1}")
        g.e(f"s_lshl_b32 s{S_OST}, s{S_BR}, 3\ns_add_u32 s{S_OST}, s{S_OST}, s{S_B}\ns_lshl_b32 s{S_OST}, s{S_OST}, 5\ns_add_u32 s{S_OST}, s{S_OST}, s{S_H0}\ns_mul_i32 s{S_OST}, s{S_OST}, 24576")
        g.e(f"s_mul_i32 s{S_T1}, s{S_QH}, 12288\ns_add_u32 s{S_OST}, s{S_OST}, s{S_T1}\ns_lshl_b32 s{S_T1}, s{S_KH}, 11\ns_add_u32 s{S_OST}, s{S_OST}, s{S_T1}")
        g.e(f"s_mov_b32 s{S_C}, {f2u(C_SCALE):#x}")

    def srds(self):
        g = self.g
        g.e("s_waitcnt lgkmcnt(0)")
        srd(g, S_X, 72, 73, 786432); srd(g, S_WQ, 78, 79, 4194304)
        srd(g, S_K, 74, 75, 33554432); srd(g, S_V, 76, 77, 33554432)
    def srds2(self):
        g = self.g
        srd(g, S_WO, 80, 81, 4194304); srd(g, S_OUT, 84, 85, 1572864)
        srd(g, S_WS, 88, 89, 268435456); srd(g, S_DBG, 86, 87, 256)
        g.e(f"s_lshr_b32 s{S_T2}, s2, 6\ns_add_u32 s{S_T2}, s{S_T2}, s{S_NT}")
        g.e(f"s_lshl_b32 s{S_T0}, s{S_W}, 20\ns_lshl_b32 s{S_T1}, s{S_NT}, 7\ns_add_u32 s{S_T0}, s{S_T0}, s{S_T1}")
        g.e(f"s_lshl_b32 s{S_T3}, s{S_BR}, 3\ns_add_u32 s{S_T3}, s{S_T3}, s{S_OB}\ns_mul_i32 s{S_T3}, s{S_T3}, {32*24576}")
        g.e(f"s_mul_i32 s{S_T1}, s{S_MH}, 12288\ns_add_u32 s{S_T3}, s{S_T3}, s{S_T1}\ns_mul_i32 s{S_T1}, s{S_W}, {8*24576}\ns_add_u32 s{S_T3}, s{S_T3}, s{S_T1}      ; O base")
        for i in range(4):
            g.e(f"s_add_u32 s{S_T1}, s{S_T2}, {i}\ns_and_b32 s{S_T1}, s{S_T1}, 3")
            g.e(f"s_lshl_b32 s{S_WOH+i}, s{S_T1}, 18\ns_add_u32 s{S_WOH+i}, s{S_WOH+i}, s{S_T0}")
            g.e(f"s_mul_i32 s{S_OH+i}, s{S_T1}, 49152\ns_add_u32 s{S_OH+i}, s{S_OH+i}, s{S_T3}")

    def stamp(self, name):
        if not self.o.get('stamps'): return
        g = self.g; n = self.nstamp; self.nstamp += 1
        on = g.bg_on; g.bg_on = False
        g.c(f"stamp {n}: {name}")
        g.e(f"s_memtime s[{S_TS}:{S_TS+1}]")
        g.e("s_waitcnt lgkmcnt(0)"); g.lgq = []
        g.e(f"s_sub_u32 s{S_TS}, s{S_TS}, s{S_TSB}")
        g.e(f"v_writelane_b32 v255, s{S_TS}, {n}")
        g.bg_on = on
        print("stamp", n, name, file=sys.stderr)
    def stamp_flush(self):
        if not self.o.get('stamps'): return
        g = self.g
        g.e(f"s_lshl_b32 s{S_T0}, s2, 2\ns_add_u32 s{S_T0}, s{S_T0}, s{S_W}\ns_lshl_b32 s{S_T0}, s{S_T0}, 8\ns_add_u32 s{S_T0}, s{S_T0}, {64<<20}")
        g.e(f"v_lshrrev_b32 v254, 2, v{self.VLANE16}")
        g.vm(f"buffer_store_dword v255, v254, s[{S_WS}:{S_WS+3}], s{S_T0} offen", 'stamp')

    def setup_kv_addr(self):
        g = self.g
        g.c("K/V dma voffsets and read bases")
        g.e("v_lshrrev_b32 v2, 4, v0\nv_and_b32 v3, 15, v0")
        for i in range(4):
            g.e(f"v_add_u32 v4, {4*i}, v2\nv_xor_b32 v4, v4, v3\nv_lshlrev_b32 v4, 4, v4\nv_lshl_add_u32 v{self.VDK+i}, v2, 8, v4")
    def setup_kv_addr2(self, T):
        g = self.g
        L = self.VLANE16
        g.e(f"v_lshrrev_b32 v{T}, 8, v{L}\nv_bfe_u32 v{T+1}, v{L}, 4, 4")
        for i in range(2):
            g.e(f"v_add_u32 v{T+2}, {4*i}, v{T}\nv_lshlrev_b32 v{T+2}, 1, v{T+2}\nv_xor_b32 v{T+2}, v{T+2}, v{T+1}\nv_lshlrev_b32 v{T+2}, 4, v{T+2}\nv_lshl_add_u32 v{self.VDV+i}, v{T}, 8, v{T+2}")
        g.e(f"s_lshl_b32 s{S_T0}, s{S_KH}, 13")
        g.e(f"v_xor_b32 v{T+2}, v{T}, v{T+1}\nv_lshlrev_b32 v{T+2}, 4, v{T+2}\nv_lshl_add_u32 v{T+2}, v{T+1}, 8, v{T+2}\nv_add_u32 v{self.VK0}, s{S_T0}, v{T+2}")
        g.e(f"v_lshrrev_b32 v{T+2}, 6, v{L}\nv_and_b32 v{T+3}, 7, v{T+2}\nv_lshlrev_b32 v{T+3}, 5, v{T+3}\nv_lshl_add_u32 v{T+3}, v{T+2}, 8, v{T+3}")
        g.e(f"v_bfe_u32 v{T+4}, v{L}, 4, 2\nv_lshl_add_u32 v{T+3}, v{T+4}, 3, v{T+3}")
        g.e(f"v_add_u32 v{T+3}, s{S_T0}, v{T+3}\ns_lshl_b32 s{S_T1}, s{S_KH}, 7\nv_xor_b32 v{self.VV0}, s{S_T1}, v{T+3}")

    def kv_fill(self, f, gap=None):
        g = self.g
        gap = gap or self.opt('gap', 64)
        if f >= 32:
            self.op_wo(1, f - 32, gap); return
        unit, isv, j = f >> 4, (f >> 3) & 1, f & 7
        slot = RING[f % 7]
        sr = S_V if isv else S_K
        for i in range(4):
            pre = f"s_add_u32 m0, s{S_M0W4}, {slot*SLOT}   ; fill {f}\ns_add_u32 s{S_BG0}, s{S_KVOFF}, {unit*131072 + j*16384}" if i == 0 else None
            v = self.VDV + (i & 1) if isv else self.VDK + i
            g.bg(pre, f"buffer_load_dwordx4 v{v}, s[{sr}:{sr+3}], s{S_BG0} offen offset:{1024*i} {self.o.get('kvpol','nt').replace('none','')} lds", ('kv', f), gap)

    VDW = 96; VDX = 104; VW0 = 107; VX0 = 108; VWC = 110; VXC = 118; QB_ = 120; QA_ = 144
    def setup_q_addr(self):
        g = self.g
        g.c("Q-phase dma voffsets")
        g.e("v_lshrrev_b32 v2, 3, v0\nv_and_b32 v3, 7, v0\nv_lshrrev_b32 v5, 1, v2")
        for j in range(3):
            g.e(f"s_add_u32 s{S_T0}, s{S_W}, {j}\ns_and_b32 s{S_T0}, s{S_T0}, 1\ns_lshl_b32 s{S_T0}, s{S_T0}, 2")
            g.e(f"v_add_u32 v4, s{S_T0}, v5\nv_xor_b32 v4, v4, v3\nv_lshlrev_b32 v4, 4, v4\nv_lshl_add_u32 v4, v2, 10, v4")
            g.e(f"v_add_u32 v{self.VDX+j}, {j*7168}, v4")
        g.e("v_lshrrev_b32 v2, 5, v0\nv_and_b32 v3, 31, v0")
        for i in range(2):
            g.e(f"v_add_u32 v4, {2*i}, v2\nv_lshlrev_b32 v4, 1, v4\nv_xor_b32 v4, v4, v3\nv_lshlrev_b32 v4, 4, v4\nv_lshl_add_u32 v{6+i}, v2, 13, v4")
        for i in range(4):
            g.e(f"v_add_u32 v{self.VDW+i}, {i*15360}, v{6+(i&1)}")
        for i in range(4):
            g.e(f"v_xor_b32 v{self.VDW+4+i}, 128, v{self.VDW+i}")
    def setup_q_addr2(self):
        g = self.g
        g.e("v_lshrrev_b32 v2, 4, v0\nv_bfe_u32 v3, v0, 2, 2\nv_and_b32 v4, 3, v0")
        g.e("v_lshl_add_u32 v5, v2, 3, v3\nv_lshlrev_b32 v5, 9, v5")
        g.e("v_and_b32 v6, 1, v2\nv_lshl_add_u32 v6, v6, 2, v3\nv_lshl_add_u32 v5, v6, 5, v5\nv_lshl_add_u32 v5, v4, 3, v5")
        g.e(f"s_lshl_b32 s{S_T0}, s{S_KH}, 8\nv_add_u32 v{self.VW0}, s{S_T0}, v5")
        g.e("v_and_b32 v3, 15, v0\nv_lshrrev_b32 v4, 1, v3\nv_xor_b32 v4, v4, v2\nv_lshlrev_b32 v4, 4, v4\nv_lshl_add_u32 v4, v3, 7, v4")
        g.e(f"s_mul_i32 s{S_T0}, s{S_QH}, 6144\nv_add_u32 v{self.VX0}, s{S_T0}, v4")

    def q_fill(self, st):
        g = self.g
        buf = st % 3
        wb, xb = buf * 2 * SLOT, SCR + buf * SLOT
        pol = self.o.get('wpol', '')
        gap = self.opt('qgap', 64)
        for j in range(3):
            pre = None
            if j == 0:
                pre = (f"s_add_u32 s{S_BG1}, s{S_ROT}, {st}    ; q fill {st}\ns_and_b32 s{S_BG1}, s{S_BG1}, 7\ns_add_u32 m0, s{S_M0W3}, {xb}\n"
                       f"s_lshl_b32 s{S_BG0}, s{S_BG1}, 7\ns_add_u32 s{S_BG0}, s{S_BG0}, s{S_XOFF}")
            g.bg(pre, f"buffer_load_dwordx4 v{self.VDX+j}, s[{S_X}:{S_X+3}], s{S_BG0} offen offset:{1024*j} {pol} lds", ('q', st), gap)
        for grp in range(2):
            for i in range(4):
                pre = None
                if i == 0:
                    pre = f"s_add_u32 m0, s{S_M0W8}, {wb + grp*4096}\n"
                    pre += f"s_add_u32 s{S_BG0}, s{S_BG0}, {8*8192}" if grp else f"s_lshl_b32 s{S_BG0}, s{S_BG1}, 19\ns_add_u32 s{S_BG0}, s{S_BG0}, s{S_WQOFF}"
                g.bg(pre, f"buffer_load_dwordx4 v{self.VDW+4*grp+i}, s[{S_WQ}:{S_WQ+3}], s{S_BG0} offen offset:{1024*i} {pol} lds", ('q', st), gap)

    def q_step(self, st, after_barrier):
        g = self.g
        buf = st % 3
        wb, xb = buf * 2 * SLOT, SCR + buf * SLOT
        g.c(f"==== Q step {st}")
        g.e(f"v_add_u32 v{self.VWC}, {wb}, v{self.VW0}")
        g.e(f"v_add_u32 v{self.VXC}, {xb}, v{self.VX0}")
        for dt in range(1, 8): g.e(f"v_xor_b32 v{self.VWC+dt}, {32*dt}, v{self.VWC}")
        g.e(f"v_xor_b32 v{self.VXC+1}, 64, v{self.VXC}")
        g.wait(vm=('q', st))
        g.e("s_barrier")
        def rd_x(u):
            for qt in range(3):
                g.ds(f"ds_read_b128 {vr(self.QB_ + u*12 + qt*4)}, v{self.VXC+u} offset:{qt*2048}", ('x', u))
        def rd_w(u, dt):
            a = self.QA_ + (dt % 8) * 4
            g.ds(f"ds_read_b64_tr_b16 {vr(a,2)}, v{self.VWC+dt} offset:{u*16384}", ('w', u, dt))
            g.ds(f"ds_read_b64_tr_b16 {vr(a+2,2)}, v{self.VWC+dt} offset:{u*16384+2048}", ('w', u, dt))
        rd_x(0)
        for dt in range(4): rd_w(0, dt)
        after_barrier()
        g.try_bg()
        seq = [(u, dt) for u in range(2) for dt in range(8)]
        LOOK = 4
        for n, (u, dt) in enumerate(seq):
            g.wait(lg=[('x', u), ('w', u, dt)])
            a = self.QA_ + dt * 4
            for qt in range(3):
                acc = (dt * 3 + qt) * 4
                csrc = '0' if (st == 0 and u == 0) else vr(acc)
                g.e(f"v_mfma_f32_16x16x32_bf16 {vr(acc)}, {vr(a)}, {vr(self.QB_ + u*12 + qt*4)}, {csrc}")
                if qt == 0:
                    if n == 2: rd_x(1)
                    if n + LOOK < 16: rd_w(*seq[n + LOOK])

    AQ = [96, 144]
    def q_exchange(self, after_barrier):
        g = self.g
        g.c("==== Q exchange")
        g.e(f"v_lshrrev_b32 v96, 8, v{self.VLANE16}\nv_bfe_u32 v97, v{self.VLANE16}, 4, 4")
        g.e("v_lshrrev_b32 v98, 1, v96\nv_xor_b32 v98, v98, v97\nv_lshlrev_b32 v98, 4, v98\nv_lshl_add_u32 v98, v97, 8, v98")
        g.e("v_and_b32 v99, 1, v96\nv_lshl_add_u32 v98, v99, 3, v98")
        g.e(f"s_mul_i32 s{S_T0}, s{S_QH}, 12288\ns_mul_i32 s{S_T1}, s{S_KH}, 24576\ns_add_u32 s{S_T1}, s{S_T1}, s{S_T0}\ns_add_u32 s{S_T1}, s{S_T1}, {SCR}")
        g.e(f"v_add_u32 v100, s{S_T1}, v98")
        for dt in range(1, 8): g.e(f"v_xor_b32 v{100+dt}, {32*dt}, v100")
        g.e("v_xor_b32 v98, v96, v97\nv_lshlrev_b32 v98, 4, v98\nv_lshl_add_u32 v98, v97, 8, v98")
        g.e(f"s_add_u32 s{S_T0}, s{S_T0}, {SCR}\nv_add_u32 v108, s{S_T0}, v98")
        for t in range(1, 4): g.e(f"v_xor_b32 v{108+t}, {64*t}, v108")
        g.e("s_barrier")
        after_barrier()
        for dt in range(8):
            for qt in range(3):
                acc = (dt * 3 + qt) * 4
                d = 112 + (dt * 3 + qt) * 2
                g.e(f"v_cvt_pk_bf16_f32 v{d}, v{acc}, v{acc+1}\nv_cvt_pk_bf16_f32 v{d+1}, v{acc+2}, v{acc+3}")
                g.ds(f"ds_write_b64 v{100+dt}, {vr(d,2)} offset:{qt*4096}", 'qw')
        self.setup_kv_addr2(0)
        g.wait(lg='all')
        g.e("s_barrier")
        for eta in range(2):
            for qt in range(3):
                for t in range(4):
                    g.ds(f"ds_read_b128 {ar(self.AQ[eta] + (qt*4+t)*4)}, v{108+t} offset:{eta*24576 + qt*4096}", ('qr', eta))

    def s_step(self, unit, j, after_barrier, extra_wait=None):
        g = self.g
        f = unit * 16 + j
        slot = RING[f % 7] * SLOT
        g.c(f"==== S{unit} step {j} (fill {f})")
        g.e(f"v_add_u32 v{self.VKC}, {slot}, v{self.VK0}")
        for t in range(1, 4): g.e(f"v_xor_b32 v{self.VKC+t}, {64*t}, v{self.VKC}")
        g.wait(vm=[('kv', f)] + (extra_wait or []), lg='all')
        g.e("s_barrier")
        for tau in range(2):
            for t in range(4):
                g.ds(f"ds_read_b128 {vr(self.KF + (tau*4+t)*4)}, v{self.VKC+t} offset:{tau*4096}", ('k', tau, t))
        after_barrier()
        g.try_bg()
        for tau in range(2):
            for t in range(4):
                g.wait(lg=('k', tau, t))
                for qt in range(3):
                    acc = (j * 3 + qt) * 8 + tau * 4
                    csrc = '0' if t == 0 else vr(acc)
                    g.e(f"v_mfma_f32_16x16x32_bf16 {vr(acc)}, {vr(self.KF + (tau*4+t)*4)}, {ar(self.AQ[unit] + (qt*4+t)*4)}, {csrc}")

    def softmax(self, unit, mid=None):
        g = self.g
        g.c(f"==== softmax {unit}")
        T = 192
        def sreg(j, qt, i): return (j * 3 + qt) * 8 + i
        for qt in range(3):
            regs = [sreg(j, qt, i) for j in range(8) for i in range(8)]
            g.e(f"v_max3_f32 v{T+qt*2}, v{regs[0]}, v{regs[1]}, v{regs[2]}")
            g.e(f"v_max3_f32 v{T+qt*2+1}, v{regs[3]}, v{regs[4]}, v{regs[5]}")
            rest = regs[6:]; k = 0
            while len(rest) >= 2:
                g.e(f"v_max3_f32 v{T+qt*2+k}, v{T+qt*2+k}, v{rest[0]}, v{rest[1]}"); rest = rest[2:]; k ^= 1
            g.e(f"v_max_f32 v{self.VM+qt}, v{T+qt*2}, v{T+qt*2+1}")
        def xreduce(base, op):
            for sw in ('v_permlane32_swap_b32', 'v_permlane16_swap_b32'):
                for qt in range(3): g.e(f"v_mov_b32 v{T+qt}, v{base+qt}")
                for qt in range(3): g.e(f"{sw} v{T+qt}, v{base+qt}")
                for qt in range(3): g.e(f"{op} v{base+qt}, v{T+qt}, v{base+qt}")
        xreduce(self.VM, 'v_max_f32')
        for qt in range(3): g.e(f"v_mul_f32 v{self.VM+qt}, s{S_C}, v{self.VM+qt}")
        SUM = T + 8
        pk = not self.o.get('nopk')
        MP = T + 16
        if pk:
            for qt in range(3): g.e(f"v_mov_b32 v{MP+2*qt}, v{self.VM+qt}")
        first = [True] * 3
        for j in range(8):
            if mid and j in mid: mid[j]()
            for qt in range(3):
                b = sreg(j, qt, 0)
                if pk:
                    for i in range(0, 8, 2):
                        g.e(f"v_pk_fma_f32 {vr(b+i,2)}, {vr(b+i,2)}, s[{S_C}:{S_C+1}], {vr(MP+2*qt,2)} op_sel_hi:[1,0,0] neg_lo:[0,0,1] neg_hi:[0,0,1]")
                else:
                    for i in range(8): g.e(f"v_fma_f32 v{b+i}, v{b+i}, s{S_C}, -v{self.VM+qt}")
                for i in range(8): g.e(f"v_exp_f32 v{b+i}, v{b+i}")
                s = SUM + 2 * qt
                for i in range(0, 8, 2):
                    if pk:
                        if first[qt] and i == 0:
                            g.e(f"v_pk_add_f32 {vr(s,2)}, {vr(b,2)}, {vr(b+2,2)}")
                        elif first[qt] and i == 2: pass
                        else: g.e(f"v_pk_add_f32 {vr(s,2)}, {vr(s,2)}, {vr(b+i,2)}")
                    else:
                        if first[qt] and i == 0: g.e(f"v_mov_b32 v{s}, v{b}\nv_mov_b32 v{s+1}, v{b+1}")
                        else: g.e(f"v_add_f32 v{s}, v{s}, v{b+i}\nv_add_f32 v{s+1}, v{s+1}, v{b+i+1}")
                first[qt] = False
                p = (j * 3 + qt) * 4
                for i in range(4): g.e(f"v_cvt_pk_bf16_f32 v{p+i}, v{b+2*i}, v{b+2*i+1}")
        for qt in range(3): g.e(f"v_add_f32 v{self.VL+qt}, v{SUM+qt*2}, v{SUM+qt*2+1}")
        xreduce(self.VL, 'v_add_f32')
        g.e(f"s_lshl_b32 s{S_T0}, s{S_W}, 11\ns_add_u32 s{S_T0}, s{S_T0}, {SCR}")
        g.e(f"v_add_u32 v{T}, s{S_T0}, v{self.VLANE16}")
        g.e(f"v_xor_b32 v{self.VST}, 4096, v{T}     ; partner (w^2)")
        g.ds(f"ds_write_b128 v{T}, {vr(self.VM)}", 'st')
        g.ds(f"ds_write_b64 v{T}, {vr(self.VM+4, 2)} offset:1024", 'st')

    def stats_combine_read(self):
        g = self.g
        g.ds(f"ds_read_b128 a[240:243], v{self.VST}", 'str')
        g.ds(f"ds_read_b64 a[244:245], v{self.VST} offset:1024", 'str')
    def stats_combine(self):
        g = self.g
        g.c("combine softmax stats with partner wave")
        g.wait(lg='str')
        A, B = self.VFA, self.VFB
        t0, t1 = 238, 239
        for qt in range(3):
            g.e(f"v_accvgpr_read_b32 v{t0}, a{240+qt}")
            g.e(f"v_accvgpr_read_b32 v{t1}, a{243+qt}")
            g.e(f"v_max_f32 v{A+qt}, v{t0}, v{self.VM+qt}")
            g.e(f"v_sub_f32 v{B+qt}, v{t0}, v{A+qt}")
            g.e(f"v_sub_f32 v{A+qt}, v{self.VM+qt}, v{A+qt}")
            g.e(f"v_exp_f32 v{B+qt}, v{B+qt}")
            g.e(f"v_exp_f32 v{A+qt}, v{A+qt}")
            g.e(f"v_mul_f32 v{t1}, v{t1}, v{B+qt}")
            g.e(f"v_fma_f32 v{t1}, v{self.VL+qt}, v{A+qt}, v{t1}")
            g.e(f"v_rcp_f32 v{t1}, v{t1}")
            g.e(f"v_mul_f32 v{A+qt}, v{A+qt}, v{t1}")
            g.e(f"v_mul_f32 v{B+qt}, v{B+qt}, v{t1}")

    OACC = 96
    def pv_step(self, unit, j, after_barrier):
        g = self.g
        f = unit * 16 + 8 + j
        slot = RING[f % 7] * SLOT
        g.c(f"==== PV{unit} step {j} (fill {f})")
        g.e(f"v_add_u32 v{self.VKC}, {slot}, v{self.VV0}")
        for d in range(1, 8): g.e(f"v_xor_b32 v{self.VKC+d}, {32*d}, v{self.VKC}")
        g.wait(vm=('kv', f), lg='all')
        g.e("s_barrier")
        def rd(d):
            a = self.KF + d * 4
            g.ds(f"ds_read_b64_tr_b16 {vr(a,2)}, v{self.VKC+d}", ('v', d))
            g.ds(f"ds_read_b64_tr_b16 {vr(a+2,2)}, v{self.VKC+d} offset:4096", ('v', d))
        for d in range(6): rd(d)
        if j == 0: self.stats_combine_read()
        after_barrier()
        g.try_bg()
        for d in range(8):
            g.wait(lg=('v', d))
            for qt in range(3):
                acc = self.OACC + (d * 3 + qt) * 4
                csrc = '0' if j == 0 else vr(acc)
                g.e(f"v_mfma_f32_16x16x32_bf16 {vr(acc)}, {vr(self.KF + d*4)}, {vr((j*3+qt)*4)}, {csrc}")
                if qt == 0 and d + 6 < 8: rd(d + 6)
        if j == 0: self.stats_combine()

    def o_exchange(self, unit, at_start, after_barrier):
        g = self.g
        g.c(f"==== O exchange + publish unit {unit}")
        T = 192
        g.e(f"s_mul_i32 s{S_T0}, s{S_W}, 12288\ns_add_u32 s{S_T0}, s{S_T0}, {SCR}")
        g.e(f"v_add_u32 v{T}, s{S_T0}, v{self.VLANE16}")
        g.e(f"s_xor_b32 s{S_T1}, s{S_W}, 2\ns_mul_i32 s{S_T1}, s{S_T1}, 12288\ns_add_u32 s{S_T1}, s{S_T1}, {SCR}")
        g.e(f"v_add_u32 v{T+1}, s{S_T1}, v{self.VLANE16}")
        at_start()
        for i in range(12):
            g.ds(f"ds_write_b128 v{T}, {vr(self.OACC + 48 + i*4)} offset:{i*1024}", 'ow')
            qt = i % 3
            for r in range(4):
                a = self.OACC + i * 4 + r
                g.e(f"v_mul_f32 v{a}, v{a}, v{self.VFA+qt}")
        g.wait(lg='all')
        g.e("s_barrier")
        order = [(2 * ks + h) * 3 + qt for ks in range(2) for qt in range(3) for h in range(2)]
        for i in order:
            g.ds(f"ds_read_b128 {vr(i*4)}, v{T+1} offset:{i*1024}", ('or', i))
        after_barrier()
        pol = self.o.get('opol', 'sc1').replace('none', '')
        g.e(f"s_add_u32 s{S_T0}, s{S_OST}, {unit*24576}\ns_add_u32 s{S_T1}, s{S_T0}, 4096\ns_add_u32 s{S_T2}, s{S_T0}, 8192")
        for ks in range(2):
            for qt in range(3):
                dst = 48 + (ks * 3 + qt) * 4
                for h in range(2):
                    i = (2 * ks + h) * 3 + qt
                    g.wait(lg=('or', i))
                    for r in range(4):
                        a = self.OACC + i * 4 + r
                        g.e(f"v_fma_f32 v{a}, v{i*4+r}, v{self.VFB+qt}, v{a}")
                    a = self.OACC + i * 4
                    g.e(f"v_cvt_pk_bf16_f32 v{dst+2*h}, v{a}, v{a+1}\nv_cvt_pk_bf16_f32 v{dst+2*h+1}, v{a+2}, v{a+3}")
                g.vm(f"buffer_store_dwordx4 {vr(dst)}, v{self.VLANE16}, s[{S_WS}:{S_WS+3}], s{S_T0+qt} offen offset:{ks*1024} {pol}", ('ost', unit))

    def flag(self, r, t):
        g = self.g
        g.c(f"publish flag round {r}")
        g.e(f"v_lshl_add_u32 v{t}, v{self.VLANE16}, 4, s{S_FLAG}\nv_mov_b32 v{t+1}, {1 if r == 0 else 3}")
        g.vm(f"buffer_store_byte v{t+1}, v{t}, s[{S_DBG}:{S_DBG+3}], 0 offen sc1", ('flag', r))
    def poll_issue(self, t):
        g = self.g
        g.e(f"v_mov_b32 v{t}, s{S_POLL}")
        g.vm(f"buffer_load_dword v{self.VPOLL}, v{t}, s[{S_DBG}:{S_DBG+3}], 0 offen sc1", 'poll')
    def poll_check(self, r, t):
        g = self.g
        mask = 0x01010101 if r == 0 else 0x02020202
        on = g.bg_on; g.bg_on = False
        g.wait(vm='poll')
        g.e(f"s_mov_b32 s{S_CNT}, 0")
        g.e(f"L_poll{r}:")
        g.e(f"v_readfirstlane_b32 s{S_T0}, v{self.VPOLL}")
        g.e(f"s_and_b32 s{S_T0}, s{S_T0}, {mask:#x}\ns_cmp_eq_u32 s{S_T0}, {mask:#x}\ns_cbranch_scc1 L_polled{r}")
        g.e(f"s_add_u32 s{S_CNT}, s{S_CNT}, 1\ns_cmp_gt_u32 s{S_CNT}, 200000\ns_cbranch_scc1 L_polled{r}")
        g.e(f"s_sleep {self.opt('sleep', 2)}")
        g.e(f"v_mov_b32 v{t}, s{S_POLL}")
        g.e(f"buffer_load_dword v{self.VPOLL}, v{t}, s[{S_DBG}:{S_DBG+3}], 0 offen sc1")
        g.e("s_waitcnt vmcnt(0)")
        g.e(f"s_branch L_poll{r}")
        g.e(f"L_polled{r}:")
        g.bg_on = on

    OPACC = 192
    def setup_op_addr(self, T):
        g = self.g; L = self.VLANE16
        g.c("out-proj addresses")
        g.e(f"v_lshrrev_b32 v{T}, 7, v{L}\nv_bfe_u32 v{T+1}, v{L}, 4, 3\nv_and_b32 v{T+2}, 6, v{T}\nv_xor_b32 v{T+2}, v{T+2}, v{T+1}\nv_lshlrev_b32 v{T+2}, 4, v{T+2}\nv_lshl_add_u32 v{T+2}, v{T}, 10, v{T+2}")
        for j in range(4): g.e(f"v_add_u32 v{self.VDO+j}, {j*7168}, v{T+2}")
        g.e(f"v_lshrrev_b32 v{T}, 6, v{L}\nv_bfe_u32 v{T+1}, v{L}, 7, 2\nv_lshlrev_b32 v{T+1}, 5, v{T+1}\nv_lshl_add_u32 v{T+1}, v{T}, 7, v{T+1}\nv_bfe_u32 v{T+2}, v{L}, 4, 2")
        g.e(f"v_lshl_add_u32 v{T+1}, v{T+2}, 3, v{T+1}\nv_add_u32 v{self.VO0}, s{S_M0W4}, v{T+1}")
    def op_loc(self, r, n):
        if r == 0: return RING[(27 + n % 4) % 7]
        loc = [RING[(32 + i) % 7] for i in range(7)] + [7, 8, 9]
        return loc[n % 10]
    def op_wo(self, r, n, gap):
        g = self.g
        pol = self.o.get('wopol', '')
        for j in range(4):
            pre = f"s_add_u32 m0, s{S_M0W4}, {self.op_loc(r, n)*SLOT}   ; wo r{r} n{n}\ns_add_u32 s{S_BG0}, s{S_WOH + (n>>2)}, {r*131072 + (n&3)*32768}" if j == 0 else None
            g.bg(pre, f"buffer_load_dwordx4 v{self.VDO+j}, s[{S_WO}:{S_WO+3}], s{S_BG0} offen offset:{1024*j} {pol} lds", ('wo', r, n), gap)
    NB = 6
    def op_o(self, r, n, gap):
        g = self.g
        for qt in range(3):
            pre = f"s_add_u32 s{S_BG1}, s{S_OH + (n>>2)}, {r*24576 + qt*4096}"
            g.bg(pre, f"buffer_load_dwordx4 {ar((n % self.NB)*12 + qt*4)}, v{self.VLANE16}, s[{S_WS}:{S_WS+3}], s{S_BG1} offen offset:{(n&3)*1024} sc1", ('ob', r, n), gap)
    def op_step(self, r, n, release):
        g = self.g
        g.c(f"==== OP round {r} step {n}")
        VOC = self.VKC + (n & 1) * 4
        AF = self.KF + (n & 1) * 16
        g.e(f"v_add_u32 v{VOC}, {self.op_loc(r, n)*SLOT}, v{self.VO0}")
        for nu in range(1, 4): g.e(f"v_xor_b32 v{VOC+nu}, {32*nu}, v{VOC}")
        g.wait(vm=('wo', r, n))
        for nu in range(4):
            a = AF + nu * 4
            g.ds(f"ds_read_b64_tr_b16 {vr(a,2)}, v{VOC+nu}", ('a', n, nu))
            g.ds(f"ds_read_b64_tr_b16 {vr(a+2,2)}, v{VOC+nu} offset:2048", ('a', n, nu))
        release()
        g.try_bg()
        g.wait(vm=('ob', r, n))
        for nu in range(4):
            g.wait(lg=('a', n, nu))
            for qt in range(3):
                acc = self.OPACC + (nu * 3 + qt) * 4
                csrc = '0' if (r == 0 and n == 0) else ar(acc)
                g.e(f"v_mfma_f32_16x16x32_bf16 {ar(acc)}, {vr(AF + nu*4)}, {ar((n % self.NB)*12 + qt*4)}, {csrc}")

    def final(self):
        g = self.g; L16 = self.VLANE16
        g.c("==== final reduce")
        g.e(f"s_mul_i32 s{S_T0}, s{S_W}, 12288\ns_add_u32 s{S_T0}, s{S_T0}, {SCR}\nv_add_u32 v100, s{S_T0}, v{L16}")
        g.e(f"s_add_u32 s{S_T0}, s{S_M0W3}, {SCR}\nv_add_u32 v103, s{S_T0}, v{L16}")
        g.e(f"v_bfe_u32 v101, v{L16}, 4, 4\nv_lshrrev_b32 v102, 8, v{L16}\nv_lshlrev_b32 v101, 11, v101\nv_lshl_add_u32 v101, v102, 3, v101")
        g.e(f"s_mul_i32 s{S_T0}, s{S_OB}, {96*2048}\ns_mul_i32 s{S_T1}, s{S_MH}, {48*2048}\ns_add_u32 s{S_T0}, s{S_T0}, s{S_T1}")
        g.e(f"s_lshl_b32 s{S_T1}, s{S_BR}, 10\ns_add_u32 s{S_T0}, s{S_T0}, s{S_T1}\ns_lshl_b32 s{S_T1}, s{S_NT}, 7\ns_add_u32 s{S_T0}, s{S_T0}, s{S_T1}\ns_lshl_b32 s{S_T1}, s{S_W}, 5\ns_add_u32 s{S_T0}, s{S_T0}, s{S_T1}")
        g.e("s_barrier")
        for i in range(12):
            g.ds(f"ds_write_b128 v100, {ar(self.OPACC + i*4)} offset:{i*1024}", 'fw')
        g.wait(lg='all')
        g.e("s_barrier")
        for qt in range(3):
            for src in range(4):
                g.ds(f"ds_read_b128 {vr((src*3+qt)*4)}, v103 offset:{src*12288 + qt*1024}", ('fr', qt))
        for qt in range(3):
            g.wait(lg=('fr', qt))
            for r in range(4):
                a = qt * 4 + r
                g.e(f"v_add_f32 v{a}, v{a}, v{12+a}\nv_add_f32 v{24+a}, v{24+a}, v{36+a}\nv_add_f32 v{a}, v{a}, v{24+a}")
            g.e(f"v_cvt_pk_bf16_f32 v{48+qt*2}, v{qt*4}, v{qt*4+1}\nv_cvt_pk_bf16_f32 v{49+qt*2}, v{qt*4+2}, v{qt*4+3}")
            if qt: g.e(f"s_add_u32 s{S_T0}, s{S_T0}, {16*2048}")
            g.vm(f"buffer_store_dwordx2 {vr(48+qt*2,2)}, v101, s[{S_OUT}:{S_OUT+3}], s{S_T0} offen", 'out')

def build(opts):
    k = K(opts); g = k.g
    smgap = k.opt('smgap', 200)
    opgap = k.opt('opgap', 16)
    rel = {('q', 6): [1, 2], ('q', 7): [3, 4], 'qx': [5, 6],
           ('s', 0, 4): [7], ('s', 0, 5): [8], ('s', 0, 6): [9], ('s', 0, 7): [10],
           ('pv', 0, 1): [14], ('pv', 0, 3): [15], ('pv', 0, 5): [16], ('pv', 0, 6): [17], ('pv', 0, 7): [18],
           ('ox', 0): [19, 20],
           ('s', 1, 1): [21], ('s', 1, 3): [22], ('s', 1, 4): [23], ('s', 1, 5): [24], ('s', 1, 6): [25], ('s', 1, 7): [26],
           ('pv', 1, 3): [30], ('pv', 1, 4): [31], ('pv', 1, 5): [32], ('pv', 1, 6): [33], ('pv', 1, 7): [34],
           ('ox', 1): [35, 36, 37], ('oxb', 1): [38]}
    if opts.get('nowo2pf'):
        for kk in [('pv', 1, 5), ('pv', 1, 6), ('pv', 1, 7), ('ox', 1), ('oxb', 1)]: del rel[kk]
    def R(key, gap=None):
        def fn():
            for f in rel.get(key, []): k.kv_fill(f, gap)
        return fn
    k.prologue("L_end")
    k.setup_q_addr()
    k.srds()
    k.q_fill(0); g.flush_bg()
    k.setup_kv_addr()
    k.kv_fill(0); k.q_fill(1); g.flush_bg()
    k.setup_q_addr2()
    k.srds2()
    k.stamp("issued first")
    g.bg_on = True
    for st in range(8):
        def ab(st=st):
            if st + 2 < 8: k.q_fill(st + 2)
            R(('q', st))()
        k.q_step(st, ab)
        if st in (0, 7): k.stamp(f"q step {st} done")
    k.q_exchange(R('qx'))
    k.stamp("q exch")
    for j in range(8): k.s_step(0, j, R(('s', 0, j)))
    k.stamp("S0")
    for f in (11, 12, 13): k.kv_fill(f, smgap)
    k.softmax(0)
    k.stamp("SM0")
    for j in range(8): k.pv_step(0, j, R(('pv', 0, j)))
    k.stamp("PV0")
    k.o_exchange(0, R(('ox', 0), 128), lambda: None)
    k.stamp("OX0")
    FJ = k.opt('flagstep', 3)
    for j in range(8):
        def ab(j=j):
            if j == FJ: k.flag(0, 232)
            R(('s', 1, j))()
        k.s_step(1, j, ab, extra_wait=[('ost', 0)] if j == FJ else None)
    k.stamp("S1")
    g.flush_bg()
    k.setup_op_addr(232)
    def mid_poll(): k.poll_issue(231)
    def mid_wo():
        for n in range(3): k.op_wo(0, n, 128)
    k.softmax(1, mid={3: mid_poll, 5: mid_wo})
    k.stamp("SM1")
    g.wait(lg='all')
    g.e("s_barrier")
    k.poll_check(0, 231)
    LA0 = 3
    for n in range(LA0): k.op_o(0, n, opgap)
    g.flush_bg()
    for n in range(16):
        def rl(n=n):
            if n + LA0 < 16:
                k.op_wo(0, n + LA0, opgap); k.op_o(0, n + LA0, opgap)
            else:
                k.kv_fill(27 + (n + LA0 - 16), opgap)
        k.op_step(0, n, rl)
    k.stamp("OP1")
    for j in range(8): k.pv_step(1, j, R(('pv', 1, j)))
    k.stamp("PV1")
    k.o_exchange(1, R(('ox', 1), 96), R(('oxb', 1), 96))
    k.stamp("OX1")
    g.wait(vm=('ost', 1))
    k.stamp("ost1 done")
    g.e("s_barrier")
    k.flag(1, 232)
    g.flush_bg()
    for n in (range(10) if opts.get('nowo2pf') else (7, 8, 9)): k.op_wo(1, n, 64)
    g.flush_bg()
    k.stamp("flagged")
    k.poll_issue(231)
    k.poll_check(1, 231)
    k.stamp("polled")
    LA1 = k.opt('la1', 4)
    for n in range(LA1): k.op_o(1, n, opgap)
    g.flush_bg()
    for n in range(16):
        def rl(n=n):
            if n + LA1 < 16: k.op_o(1, n + LA1, opgap)
            if n >= 1 and n + 9 < 16: k.op_wo(1, n + 9, opgap)
        k.op_step(1, n, rl)
    k.stamp("OP2")
    g.bg_on = False
    k.final()
    k.stamp("end")
    k.stamp_flush()
    g.e("s_waitcnt vmcnt(0)")
    g.e("L_end:\ns_endpgm")
    t = g.finalize()
    print("nops", g.nops, "maxvm", g.maxvm, "ninstr", len(g.ins), "est cycles", g.cyc, file=sys.stderr)
    s = header([f"; @launch grid=(256,1,1) block=(256,1,1) lds={LDS_BYTES}"])
    s += kstart(NAME) + t
    s += kdesc(NAME, 512, 102, 256)
    return s

if __name__ == "__main__":
    out = sys.argv[1]
    opts = {}
    for a in sys.argv[2:]:
        kk, _, vv = a.partition('=')
        opts[kk] = vv if vv else True
    txt = build(opts)
    import subprocess, re
    open(out, "w").write(txt.replace("CODE_BYTES", "0x12345"))
    subprocess.check_call(["clang", "-x", "assembler", "-target", "amdgcn-amd-amdhsa", "-mcpu=gfx950", "-c", out, "-o", "gen_tmp.o"])
    h = subprocess.check_output(["llvm-objdump", "-h", "gen_tmp.o"], text=True)
    size = int(re.search(r"\.text\s+([0-9a-f]+)", h).group(1), 16)
    print("code bytes", size, file=sys.stderr)
    open(out, "w").write(txt.replace("CODE_BYTES", str(size)))
```

```python
import sys, math, struct
from gen_core import Gen
from asmlib import *

SLOT = 16384
SCR = 7 * SLOT
RING = [6, 4, 5, 0, 1, 2, 3]
LDS_BYTES = 163840
C_SCALE = math.log2(math.e) / math.sqrt(128.0)
def f2u(x): return struct.unpack('<I', struct.pack('<f', x))[0]

S_X, S_K, S_V, S_WQ, S_WO, S_OUT, S_WS, S_DBG = 8, 12, 16, 20, 24, 28, 32, 36
S_W, S_QH, S_KH, S_BR, S_B, S_H0 = 40, 41, 42, 43, 44, 45
S_KVOFF = 46
S_FLAG = 47
S_T0, S_T1, S_T2, S_T3 = 48, 49, 50, 51
S_C = 52; S_ROT = 53; S_WQOFF, S_XOFF = 54, 55
S_OB, S_MH, S_NT = 56, 57, 58
S_M0W4, S_M0W8, S_M0W3 = 59, 60, 61
S_OST = 62
S_POLL = 63
S_TS, S_TSB = 64, 66
S_BG0, S_BG1 = 68, 69
S_CNT = 70
S_WOH = 72
S_OH = 76
S_CODE = 92
S_NONCE = 71
S_WOPF = 90
FLAGS = 16 << 20

def srd(g, s, lo, hi, size):
    g.e(f"s_mov_b32 s{s}, s{lo}\ns_mov_b32 s{s+1}, s{hi}\ns_mov_b32 s{s+2}, {size}\ns_mov_b32 s{s+3}, 0x20000")
def vr(a, n=4): return f"v[{a}:{a+n-1}]"
def ar(a, n=4): return f"a[{a}:{a+n-1}]"

class K:
    def __init__(self, opts):
        self.g = Gen(); self.o = opts; self.nstamp = 0
    def opt(self, k, d): return type(d)(self.o.get(k, d))

    VDK = 240; VDV = 244; VK0 = 246; VV0 = 247; VLANE16 = 248
    VDO = 240; VO0 = 246
    VM = 232; VL = 235; VST = 238; VFA = 249; VFB = 252
    KF = 192; VKC = 224
    VPOLL = 239

    LDS_BC = SCR + 12288
    def prologue(self, endlabel):
        g = self.g
        g.e(f"s_cmp_ge_u32 s2, 256\ns_cbranch_scc1 {endlabel}")
        g.e("s_load_dwordx4 s[84:87], s[0:1], 80")
        g.e("s_getreg_b32 s3, hwreg(HW_REG_XCC_ID)")
        g.e("s_and_b32 s3, s3, 7")
        g.e("s_lshr_b32 s4, s3, 2\ns_mul_i32 s4, s4, 40")
        g.e("s_add_u32 s4, s0, s4\ns_addc_u32 s5, s1, 0")
        g.e("s_load_dwordx2 s[72:73], s[4:5], 0      ; x   (of this xcd's branch, for L2 warm-up)")
        g.e("s_load_dwordx2 s[78:79], s[4:5], 24     ; wq")
        if self.o.get('stamps') or self.o.get('dbgtime'): g.e(f"s_memtime s[{S_TSB}:{S_TSB+1}]")
        if self.o.get('dbgtime'): g.e(f"s_memrealtime s[96:97]")
        g.e("v_lshrrev_b32 v1, 6, v0")
        g.e("v_and_b32 v0, 63, v0                    ; lane")
        g.e(f"v_readfirstlane_b32 s{S_W}, v1")
        g.e(f"v_lshlrev_b32 v{self.VLANE16}, 4, v0")
        g.e(f"s_lshl_b32 s{S_M0W4}, s{S_W}, 12\ns_lshl_b32 s{S_M0W8}, s{S_W}, 13\ns_mul_i32 s{S_M0W3}, s{S_W}, 3072")
        g.e(f"s_and_b32 s{S_QH}, s{S_W}, 1\ns_lshr_b32 s{S_KH}, s{S_W}, 1")
        g.e(f"s_lshl_b32 s{S_T0}, s3, 5\ns_add_u32 s{S_T0}, s{S_T0}, s{S_M0W4}")
        g.e(f"v_lshl_add_u32 v8, v{self.VLANE16}, 4, s{S_T0}\nv_mov_b32 v9, 1")
        g.e("s_lshr_b32 s6, s2, 3")
        g.e("v_lshrrev_b32 v10, 5, v0\nv_and_b32 v11, 31, v0\nv_lshlrev_b32 v11, 6, v11\nv_lshl_add_u32 v10, v10, 13, v11")
        g.e(f"s_lshl_b32 s{S_T1}, s6, 17\ns_lshl_b32 s{S_T2}, s{S_W}, 15\ns_add_u32 s{S_T1}, s{S_T1}, s{S_T2}\ns_and_b32 s{S_T2}, s3, 3\ns_lshl_b32 s{S_T2}, s{S_T2}, 11\ns_add_u32 s{S_T1}, s{S_T1}, s{S_T2}")
        g.e("v_lshlrev_b32 v11, 6, v0")
        g.e(f"s_mul_i32 s{S_T2}, s6, 24576\ns_mul_i32 s{S_T3}, s{S_W}, 6144\ns_add_u32 s{S_T2}, s{S_T2}, s{S_T3}")
        g.e("s_waitcnt lgkmcnt(0)")
        srd(g, S_DBG, 86, 87, 256)
        g.vm(f"buffer_atomic_add v9, v8, s[{S_DBG}:{S_DBG+3}], 0 offen sc0", 'ticket')
        srd(g, S_X, 72, 73, 786432); srd(g, S_WQ, 78, 79, 4194304)
        if self.o.get('warm') == '128':
            g.e("v_lshlrev_b32 v11, 7, v0\nv_lshrrev_b32 v10, 4, v0\nv_and_b32 v12, 15, v0\nv_lshlrev_b32 v12, 7, v12\nv_lshl_add_u32 v10, v10, 13, v12")
            g.vm(f"buffer_load_dword v12, v11, s[{S_X}:{S_X+3}], s{S_T2} offen", 'warm')
            g.vm(f"buffer_load_dword v14, v10, s[{S_WQ}:{S_WQ+3}], s{S_T1} offen", 'warm')
        if self.o.get('warm') == 'full':
            for i in range(6):
                if i == 4: g.e(f"s_add_u32 s{S_T2}, s{S_T2}, 4096")
                g.vm(f"buffer_load_dwordx4 v[12:15], v{self.VLANE16}, s[{S_X}:{S_X+3}], s{S_T2} offen offset:{(i&3)*1024}", 'warm')
            for i in range(4):
                if i: g.e(f"s_add_u32 s{S_T1}, s{S_T1}, 8192")
                for j in range(2):
                    g.vm(f"buffer_load_dwordx4 v[12:15], v{self.VLANE16}, s[{S_WQ}:{S_WQ+3}], s{S_T1} offen offset:{j*1024}", 'warm')
        if not self.o.get('nocodepf'):
            g.e(f"s_getpc_b64 s[{S_CODE}:{S_CODE+1}]")
            g.e(f"L_pc:\ns_sub_u32 s{S_CODE}, s{S_CODE}, L_pc - L_start\ns_subb_u32 s{S_CODE+1}, s{S_CODE+1}, 0")
            g.e(f"s_mov_b32 s{S_CODE+2}, CODE_BYTES\ns_mov_b32 s{S_CODE+3}, 0x20000")
            g.e(f"s_lshl_b32 s{S_T0}, s6, 11\ns_lshl_b32 s{S_T1}, s{S_W}, 20\ns_add_u32 s{S_T0}, s{S_T0}, s{S_T1}")
            g.e(f"v_lshlrev_b32 v16, 5, v0\nv_add_u32 v16, s{S_T0}, v16")
            g.vm(f"buffer_load_dword v17, v16, s[{S_CODE}:{S_CODE+3}], 0 offen", 'warm')
        self.setup_q_addr()
        self.setup_q_addr2()
        self.setup_kv_addr()
        g.e(f"v_mov_b32 v8, {self.LDS_BC}")
        g.wait(vm='ticket')
        g.e(f"s_cmp_lg_u32 s{S_W}, 0\ns_cbranch_scc1 L_tk_done")
        g.e("v_readfirstlane_b32 s6, v9")
        g.e("s_cmp_lt_u32 s6, 32\ns_cbranch_scc1 L_tk_ok")
        g.c("more than 32 workgroups on this die: take a free slot of another die's list")
        g.e("s_mov_b32 s7, 0")
        g.e("L_tk_loop:")
        g.e("s_add_u32 s3, s3, 1\ns_and_b32 s3, s3, 7\ns_add_u32 s7, s7, 1")
        g.e(f"s_lshl_b32 s{S_T0}, s3, 5")
        g.e(f"v_lshl_add_u32 v10, v{self.VLANE16}, 4, s{S_T0}\nv_mov_b32 v9, 1")
        g.e(f"buffer_atomic_add v9, v10, s[{S_DBG}:{S_DBG+3}], 0 offen sc0")
        g.e("s_waitcnt vmcnt(0)")
        g.e("v_readfirstlane_b32 s6, v9")
        g.e("s_cmp_lt_u32 s6, 32\ns_cbranch_scc1 L_tk_ok")
        g.e("s_cmp_lt_u32 s7, 7\ns_cbranch_scc1 L_tk_loop")
        g.e("s_and_b32 s6, s6, 31")
        g.e("L_tk_ok:")
        g.e("s_lshl_b32 s6, s6, 3\ns_or_b32 s6, s6, s3\nv_mov_b32 v9, s6")
        g.e("ds_write_b32 v8, v9\ns_waitcnt lgkmcnt(0)")
        g.e("L_tk_done:")
        g.e("s_barrier")
        g.e("ds_read_b32 v9, v8\ns_waitcnt lgkmcnt(0)")
        g.e("v_readfirstlane_b32 s2, v9")
        g.e("s_and_b32 s3, s2, 7")
        g.e(f"s_lshr_b32 s{S_BR}, s3, 2")
        g.e(f"s_mul_i32 s4, s{S_BR}, 40")
        g.e("s_add_u32 s4, s0, s4\ns_addc_u32 s5, s1, 0")
        g.e("s_load_dwordx8 s[72:79], s[4:5], 0      ; x, k, v, wq")
        g.e("s_load_dwordx2 s[80:81], s[4:5], 32     ; wo")
        g.e("s_load_dwordx2 s[88:89], s[0:1], 96     ; ws")
        g.e("s_lshr_b32 s6, s2, 3         ; idx")
        g.e("s_and_b32 s7, s3, 3          ; hq")
        g.e(f"s_lshr_b32 s{S_B}, s6, 2")
        g.e(f"s_and_b32 s{S_T0}, s6, 3     ; hp")
        g.e(f"s_lshl_b32 s{S_H0}, s7, 3")
        g.e(f"s_lshl_b32 s{S_T1}, s{S_T0}, 1")
        g.e(f"s_add_u32 s{S_H0}, s{S_H0}, s{S_T1}")
        g.e(f"s_add_u32 s{S_ROT}, s{S_B}, s{S_T1}\ns_and_b32 s{S_ROT}, s{S_ROT}, 7")
        g.e(f"s_lshl_b32 s{S_WQOFF}, s{S_W}, 17\ns_lshl_b32 s{S_T1}, s{S_H0}, 8\ns_add_u32 s{S_WQOFF}, s{S_WQOFF}, s{S_T1}")
        g.e(f"s_mul_i32 s{S_XOFF}, s{S_B}, 98304\ns_mul_i32 s{S_T1}, s{S_W}, 24576\ns_add_u32 s{S_XOFF}, s{S_XOFF}, s{S_T1}")
        g.e(f"s_lshl_b32 s{S_KVOFF}, s{S_B}, 5\ns_add_u32 s{S_KVOFF}, s{S_KVOFF}, s{S_H0}\ns_lshl_b32 s{S_KVOFF}, s{S_KVOFF}, 17\ns_add_u32 s{S_KVOFF}, s{S_KVOFF}, s{S_M0W4}")
    def ids2(self):
        g = self.g
        g.e(f"s_lshl_b32 s{S_FLAG}, s{S_BR}, 3\ns_add_u32 s{S_FLAG}, s{S_FLAG}, s{S_B}\ns_lshl_b32 s{S_FLAG}, s{S_FLAG}, 7")
        g.e(f"s_lshl_b32 s{S_T1}, s{S_H0}, 1\ns_add_u32 s{S_FLAG}, s{S_FLAG}, s{S_T1}\ns_add_u32 s{S_FLAG}, s{S_FLAG}, {FLAGS}")
        g.e(f"s_lshr_b32 s{S_OB}, s6, 3\ns_lshr_b32 s{S_T1}, s7, 1\ns_lshl_b32 s{S_T1}, s{S_T1}, 2\ns_add_u32 s{S_OB}, s{S_OB}, s{S_T1}")
        g.e(f"s_lshr_b32 s{S_MH}, s6, 2\ns_and_b32 s{S_MH}, s{S_MH}, 1")
        g.e(f"s_and_b32 s{S_NT}, s6, 3\ns_and_b32 s{S_T1}, s7, 1\ns_lshl_b32 s{S_T1}, s{S_T1}, 2\ns_add_u32 s{S_NT}, s{S_NT}, s{S_T1}")
        g.e(f"s_lshl_b32 s{S_POLL}, s{S_BR}, 3\ns_add_u32 s{S_POLL}, s{S_POLL}, s{S_OB}\ns_lshl_b32 s{S_POLL}, s{S_POLL}, 7\ns_lshl_b32 s{S_T1}, s{S_W}, 4\ns_add_u32 s{S_POLL}, s{S_POLL}, s{S_T1}\ns_add_u32 s{S_POLL}, s{S_POLL}, {FLAGS}")
        g.e(f"s_lshl_b32 s{S_OST}, s{S_BR}, 3\ns_add_u32 s{S_OST}, s{S_OST}, s{S_B}\ns_lshl_b32 s{S_OST}, s{S_OST}, 5\ns_add_u32 s{S_OST}, s{S_OST}, s{S_H0}\ns_mul_i32 s{S_OST}, s{S_OST}, 24576")
        g.e(f"s_mul_i32 s{S_T1}, s{S_QH}, 12288\ns_add_u32 s{S_OST}, s{S_OST}, s{S_T1}\ns_lshl_b32 s{S_T1}, s{S_KH}, 11\ns_add_u32 s{S_OST}, s{S_OST}, s{S_T1}")
        g.e(f"s_mov_b32 s{S_C}, {f2u(C_SCALE):#x}")
        g.e(f"s_lshl_b32 s{S_WOPF}, s6, 17\ns_lshl_b32 s{S_T1}, s{S_W}, 15\ns_add_u32 s{S_WOPF}, s{S_WOPF}, s{S_T1}\ns_and_b32 s{S_T1}, s7, 1\ns_lshl_b32 s{S_T1}, s{S_T1}, 9\ns_add_u32 s{S_WOPF}, s{S_WOPF}, s{S_T1}")

    def srds(self):
        g = self.g
        g.e("s_waitcnt lgkmcnt(0)")
        srd(g, S_X, 72, 73, 786432); srd(g, S_WQ, 78, 79, 4194304)
        srd(g, S_K, 74, 75, 33554432); srd(g, S_V, 76, 77, 33554432)
    def srds2(self):
        g = self.g
        srd(g, S_WO, 80, 81, 4194304); srd(g, S_OUT, 84, 85, 1572864)
        srd(g, S_WS, 88, 89, 268435456)
        g.e(f"s_lshr_b32 s{S_T2}, s2, 5\ns_add_u32 s{S_T2}, s{S_T2}, s{S_NT}")
        g.e(f"s_lshl_b32 s{S_T0}, s{S_W}, 20\ns_lshl_b32 s{S_T1}, s{S_NT}, 7\ns_add_u32 s{S_T0}, s{S_T0}, s{S_T1}")
        g.e(f"s_lshl_b32 s{S_T3}, s{S_BR}, 3\ns_add_u32 s{S_T3}, s{S_T3}, s{S_OB}\ns_mul_i32 s{S_T3}, s{S_T3}, {32*24576}")
        g.e(f"s_mul_i32 s{S_T1}, s{S_MH}, 12288\ns_add_u32 s{S_T3}, s{S_T3}, s{S_T1}\ns_mul_i32 s{S_T1}, s{S_W}, {8*24576}\ns_add_u32 s{S_T3}, s{S_T3}, s{S_T1}      ; O base")
        for i in range(4):
            g.e(f"s_add_u32 s{S_T1}, s{S_T2}, {i}\ns_and_b32 s{S_T1}, s{S_T1}, 3")
            g.e(f"s_lshl_b32 s{S_WOH+i}, s{S_T1}, 18\ns_add_u32 s{S_WOH+i}, s{S_WOH+i}, s{S_T0}")
            g.e(f"s_mul_i32 s{S_OH+i}, s{S_T1}, 49152\ns_add_u32 s{S_OH+i}, s{S_OH+i}, s{S_T3}")

    def stamp(self, name):
        if not self.o.get('stamps'): return
        g = self.g; n = self.nstamp; self.nstamp += 1
        on = g.bg_on; g.bg_on = False
        g.c(f"stamp {n}: {name}")
        g.e(f"s_memtime s[{S_TS}:{S_TS+1}]")
        g.e("s_waitcnt lgkmcnt(0)"); g.lgq = []
        g.e(f"s_sub_u32 s{S_TS}, s{S_TS}, s{S_TSB}")
        g.e(f"v_writelane_b32 v255, s{S_TS}, {n}")
        g.bg_on = on
        print("stamp", n, name, file=sys.stderr)
    def stamp_flush(self):
        if not self.o.get('stamps'): return
        g = self.g
        g.e(f"s_lshl_b32 s{S_T0}, s2, 2\ns_add_u32 s{S_T0}, s{S_T0}, s{S_W}\ns_lshl_b32 s{S_T0}, s{S_T0}, 8\ns_add_u32 s{S_T0}, s{S_T0}, {64<<20}")
        g.e(f"v_lshrrev_b32 v254, 2, v{self.VLANE16}")
        g.vm(f"buffer_store_dword v255, v254, s[{S_WS}:{S_WS+3}], s{S_T0} offen", 'stamp')

    def setup_kv_addr(self):
        g = self.g
        g.c("K/V dma voffsets and read bases")
        g.e("v_lshrrev_b32 v2, 4, v0\nv_and_b32 v3, 15, v0")
        for i in range(4):
            g.e(f"v_add_u32 v4, {4*i}, v2\nv_xor_b32 v4, v4, v3\nv_lshlrev_b32 v4, 4, v4\nv_lshl_add_u32 v{self.VDK+i}, v2, 8, v4")
    def setup_kv_addr2(self, T):
        g = self.g
        L = self.VLANE16
        g.e(f"v_lshrrev_b32 v{T}, 8, v{L}\nv_bfe_u32 v{T+1}, v{L}, 4, 4")
        for i in range(2):
            g.e(f"v_add_u32 v{T+2}, {4*i}, v{T}\nv_lshlrev_b32 v{T+2}, 1, v{T+2}\nv_xor_b32 v{T+2}, v{T+2}, v{T+1}\nv_lshlrev_b32 v{T+2}, 4, v{T+2}\nv_lshl_add_u32 v{self.VDV+i}, v{T}, 8, v{T+2}")
        g.e(f"s_lshl_b32 s{S_T0}, s{S_KH}, 13")
        g.e(f"v_xor_b32 v{T+2}, v{T}, v{T+1}\nv_lshlrev_b32 v{T+2}, 4, v{T+2}\nv_lshl_add_u32 v{T+2}, v{T+1}, 8, v{T+2}\nv_add_u32 v{self.VK0}, s{S_T0}, v{T+2}")
        g.e(f"v_lshrrev_b32 v{T+2}, 6, v{L}\nv_and_b32 v{T+3}, 7, v{T+2}\nv_lshlrev_b32 v{T+3}, 5, v{T+3}\nv_lshl_add_u32 v{T+3}, v{T+2}, 8, v{T+3}")
        g.e(f"v_bfe_u32 v{T+4}, v{L}, 4, 2\nv_lshl_add_u32 v{T+3}, v{T+4}, 3, v{T+3}")
        g.e(f"v_add_u32 v{T+3}, s{S_T0}, v{T+3}\ns_lshl_b32 s{S_T1}, s{S_KH}, 7\nv_xor_b32 v{self.VV0}, s{S_T1}, v{T+3}")

    def kv_fill(self, f, gap=None):
        g = self.g
        gap = gap or self.opt('gap', 64)
        if f >= 32:
            self.op_wo(1, f - 32, gap); return
        unit, isv, j = f >> 4, (f >> 3) & 1, f & 7
        slot = RING[f % 7]
        sr = S_V if isv else S_K
        for i in range(4):
            pre = f"s_add_u32 m0, s{S_M0W4}, {slot*SLOT}   ; fill {f}\ns_add_u32 s{S_BG0}, s{S_KVOFF}, {unit*131072 + j*16384}" if i == 0 else None
            v = self.VDV + (i & 1) if isv else self.VDK + i
            g.bg(pre, f"buffer_load_dwordx4 v{v}, s[{sr}:{sr+3}], s{S_BG0} offen offset:{1024*i} {self.o.get('kvpol','nt').replace('none','')} lds", ('kv', f), gap)

    VDW = 96; VDX = 104; VW0 = 107; VX0 = 108; VWC = 110; VXC = 118; QB_ = 120; QA_ = 144
    def setup_q_addr(self):
        g = self.g
        g.c("Q-phase dma voffsets")
        g.e("v_lshrrev_b32 v2, 3, v0\nv_and_b32 v3, 7, v0\nv_lshrrev_b32 v5, 1, v2")
        for j in range(3):
            g.e(f"s_add_u32 s{S_T0}, s{S_W}, {j}\ns_and_b32 s{S_T0}, s{S_T0}, 1\ns_lshl_b32 s{S_T0}, s{S_T0}, 2")
            g.e(f"v_add_u32 v4, s{S_T0}, v5\nv_xor_b32 v4, v4, v3\nv_lshlrev_b32 v4, 4, v4\nv_lshl_add_u32 v4, v2, 10, v4")
            g.e(f"v_add_u32 v{self.VDX+j}, {j*7168}, v4")
        g.e("v_lshrrev_b32 v2, 5, v0\nv_and_b32 v3, 31, v0")
        for i in range(2):
            g.e(f"v_add_u32 v4, {2*i}, v2\nv_lshlrev_b32 v4, 1, v4\nv_xor_b32 v4, v4, v3\nv_lshlrev_b32 v4, 4, v4\nv_lshl_add_u32 v{6+i}, v2, 13, v4")
        for i in range(4):
            g.e(f"v_add_u32 v{self.VDW+i}, {i*15360}, v{6+(i&1)}")
        for i in range(4):
            g.e(f"v_xor_b32 v{self.VDW+4+i}, 128, v{self.VDW+i}")
    def setup_q_addr2(self):
        g = self.g
        g.e("v_lshrrev_b32 v2, 4, v0\nv_bfe_u32 v3, v0, 2, 2\nv_and_b32 v4, 3, v0")
        g.e("v_lshl_add_u32 v5, v2, 3, v3\nv_lshlrev_b32 v5, 9, v5")
        g.e("v_and_b32 v6, 1, v2\nv_lshl_add_u32 v6, v6, 2, v3\nv_lshl_add_u32 v5, v6, 5, v5\nv_lshl_add_u32 v5, v4, 3, v5")
        g.e(f"s_lshl_b32 s{S_T0}, s{S_KH}, 8\nv_add_u32 v{self.VW0}, s{S_T0}, v5")
        g.e("v_and_b32 v3, 15, v0\nv_lshrrev_b32 v4, 1, v3\nv_xor_b32 v4, v4, v2\nv_lshlrev_b32 v4, 4, v4\nv_lshl_add_u32 v4, v3, 7, v4")
        g.e(f"s_mul_i32 s{S_T0}, s{S_QH}, 6144\nv_add_u32 v{self.VX0}, s{S_T0}, v4")

    def q_fill(self, st):
        g = self.g
        buf = st % 3
        wb, xb = buf * 2 * SLOT, SCR + buf * SLOT
        pol = self.o.get('wpol', '')
        gap = self.opt('qgap', 64)
        for j in range(3):
            pre = None
            if j == 0:
                pre = (f"s_add_u32 s{S_BG1}, s{S_ROT}, {st}    ; q fill {st}\ns_and_b32 s{S_BG1}, s{S_BG1}, 7\ns_add_u32 m0, s{S_M0W3}, {xb}\n"
                       f"s_lshl_b32 s{S_BG0}, s{S_BG1}, 7\ns_add_u32 s{S_BG0}, s{S_BG0}, s{S_XOFF}")
            g.bg(pre, f"buffer_load_dwordx4 v{self.VDX+j}, s[{S_X}:{S_X+3}], s{S_BG0} offen offset:{1024*j} {pol} lds", ('q', st), gap)
        for grp in range(2):
            for i in range(4):
                pre = None
                if i == 0:
                    pre = f"s_add_u32 m0, s{S_M0W8}, {wb + grp*4096}\n"
                    pre += f"s_add_u32 s{S_BG0}, s{S_BG0}, {8*8192}" if grp else f"s_lshl_b32 s{S_BG0}, s{S_BG1}, 19\ns_add_u32 s{S_BG0}, s{S_BG0}, s{S_WQOFF}"
                g.bg(pre, f"buffer_load_dwordx4 v{self.VDW+4*grp+i}, s[{S_WQ}:{S_WQ+3}], s{S_BG0} offen offset:{1024*i} {pol} lds", ('q', st), gap)

    def q_step(self, st, after_barrier):
        g = self.g
        buf = st % 3
        wb, xb = buf * 2 * SLOT, SCR + buf * SLOT
        g.c(f"==== Q step {st}")
        g.e(f"v_add_u32 v{self.VWC}, {wb}, v{self.VW0}")
        g.e(f"v_add_u32 v{self.VXC}, {xb}, v{self.VX0}")
        for dt in range(1, 8): g.e(f"v_xor_b32 v{self.VWC+dt}, {32*dt}, v{self.VWC}")
        g.e(f"v_xor_b32 v{self.VXC+1}, 64, v{self.VXC}")
        g.wait(vm=('q', st))
        g.e("s_barrier")
        def rd_x(u):
            for qt in range(3):
                g.ds(f"ds_read_b128 {vr(self.QB_ + u*12 + qt*4)}, v{self.VXC+u} offset:{qt*2048}", ('x', u))
        def rd_w(u, dt):
            a = self.QA_ + (dt % 8) * 4
            g.ds(f"ds_read_b64_tr_b16 {vr(a,2)}, v{self.VWC+dt} offset:{u*16384}", ('w', u, dt))
            g.ds(f"ds_read_b64_tr_b16 {vr(a+2,2)}, v{self.VWC+dt} offset:{u*16384+2048}", ('w', u, dt))
        rd_x(0)
        for dt in range(4): rd_w(0, dt)
        after_barrier()
        g.try_bg()
        seq = [(u, dt) for u in range(2) for dt in range(8)]
        LOOK = 4
        for n, (u, dt) in enumerate(seq):
            g.wait(lg=[('x', u), ('w', u, dt)])
            a = self.QA_ + dt * 4
            for qt in range(3):
                acc = (dt * 3 + qt) * 4
                csrc = '0' if (st == 0 and u == 0) else vr(acc)
                g.e(f"v_mfma_f32_16x16x32_bf16 {vr(acc)}, {vr(a)}, {vr(self.QB_ + u*12 + qt*4)}, {csrc}")
                if qt == 0:
                    if n == 2: rd_x(1)
                    if n + LOOK < 16: rd_w(*seq[n + LOOK])

    AQ = [96, 144]
    def q_exchange(self, after_barrier):
        g = self.g
        g.c("==== Q exchange")
        g.e(f"v_lshrrev_b32 v96, 8, v{self.VLANE16}\nv_bfe_u32 v97, v{self.VLANE16}, 4, 4")
        g.e("v_lshrrev_b32 v98, 1, v96\nv_xor_b32 v98, v98, v97\nv_lshlrev_b32 v98, 4, v98\nv_lshl_add_u32 v98, v97, 8, v98")
        g.e("v_and_b32 v99, 1, v96\nv_lshl_add_u32 v98, v99, 3, v98")
        g.e(f"s_mul_i32 s{S_T0}, s{S_QH}, 12288\ns_mul_i32 s{S_T1}, s{S_KH}, 24576\ns_add_u32 s{S_T1}, s{S_T1}, s{S_T0}\ns_add_u32 s{S_T1}, s{S_T1}, {SCR}")
        g.e(f"v_add_u32 v100, s{S_T1}, v98")
        for dt in range(1, 8): g.e(f"v_xor_b32 v{100+dt}, {32*dt}, v100")
        g.e("v_xor_b32 v98, v96, v97\nv_lshlrev_b32 v98, 4, v98\nv_lshl_add_u32 v98, v97, 8, v98")
        g.e(f"s_add_u32 s{S_T0}, s{S_T0}, {SCR}\nv_add_u32 v108, s{S_T0}, v98")
        for t in range(1, 4): g.e(f"v_xor_b32 v{108+t}, {64*t}, v108")
        g.e("s_barrier")
        after_barrier()
        for dt in range(8):
            for qt in range(3):
                acc = (dt * 3 + qt) * 4
                d = 112 + (dt * 3 + qt) * 2
                g.e(f"v_cvt_pk_bf16_f32 v{d}, v{acc}, v{acc+1}\nv_cvt_pk_bf16_f32 v{d+1}, v{acc+2}, v{acc+3}")
                g.ds(f"ds_write_b64 v{100+dt}, {vr(d,2)} offset:{qt*4096}", 'qw')
        self.setup_kv_addr2(0)
        g.wait(lg='all')
        g.e("s_barrier")
        for eta in range(2):
            for qt in range(3):
                for t in range(4):
                    g.ds(f"ds_read_b128 {ar(self.AQ[eta] + (qt*4+t)*4)}, v{108+t} offset:{eta*24576 + qt*4096}", ('qr', eta))

    def s_step(self, unit, j, after_barrier, extra_wait=None):
        g = self.g
        f = unit * 16 + j
        slot = RING[f % 7] * SLOT
        g.c(f"==== S{unit} step {j} (fill {f})")
        g.e(f"v_add_u32 v{self.VKC}, {slot}, v{self.VK0}")
        for t in range(1, 4): g.e(f"v_xor_b32 v{self.VKC+t}, {64*t}, v{self.VKC}")
        g.wait(vm=[('kv', f)] + (extra_wait or []), lg='all')
        g.e("s_barrier")
        for tau in range(2):
            for t in range(4):
                g.ds(f"ds_read_b128 {vr(self.KF + (tau*4+t)*4)}, v{self.VKC+t} offset:{tau*4096}", ('k', tau, t))
        after_barrier()
        g.try_bg()
        for tau in range(2):
            for t in range(4):
                g.wait(lg=('k', tau, t))
                for qt in range(3):
                    acc = (j * 3 + qt) * 8 + tau * 4
                    csrc = '0' if t == 0 else vr(acc)
                    g.e(f"v_mfma_f32_16x16x32_bf16 {vr(acc)}, {vr(self.KF + (tau*4+t)*4)}, {ar(self.AQ[unit] + (qt*4+t)*4)}, {csrc}")

    def softmax(self, unit, mid=None):
        g = self.g
        g.c(f"==== softmax {unit}")
        T = 192
        def sreg(j, qt, i): return (j * 3 + qt) * 8 + i
        for qt in range(3):
            regs = [sreg(j, qt, i) for j in range(8) for i in range(8)]
            g.e(f"v_max3_f32 v{T+qt*2}, v{regs[0]}, v{regs[1]}, v{regs[2]}")
            g.e(f"v_max3_f32 v{T+qt*2+1}, v{regs[3]}, v{regs[4]}, v{regs[5]}")
            rest = regs[6:]; k = 0
            while len(rest) >= 2:
                g.e(f"v_max3_f32 v{T+qt*2+k}, v{T+qt*2+k}, v{rest[0]}, v{rest[1]}"); rest = rest[2:]; k ^= 1
            g.e(f"v_max_f32 v{self.VM+qt}, v{T+qt*2}, v{T+qt*2+1}")
        def xreduce(base, op):
            for sw in ('v_permlane32_swap_b32', 'v_permlane16_swap_b32'):
                for qt in range(3): g.e(f"v_mov_b32 v{T+qt}, v{base+qt}")
                for qt in range(3): g.e(f"{sw} v{T+qt}, v{base+qt}")
                for qt in range(3): g.e(f"{op} v{base+qt}, v{T+qt}, v{base+qt}")
        xreduce(self.VM, 'v_max_f32')
        for qt in range(3): g.e(f"v_mul_f32 v{self.VM+qt}, s{S_C}, v{self.VM+qt}")
        SUM = T + 8
        pk = not self.o.get('nopk')
        MP = T + 16
        if pk:
            for qt in range(3): g.e(f"v_mov_b32 v{MP+2*qt}, v{self.VM+qt}")
        first = [True] * 3
        for j in range(8):
            if mid and j in mid: mid[j]()
            for qt in range(3):
                b = sreg(j, qt, 0)
                if pk:
                    for i in range(0, 8, 2):
                        g.e(f"v_pk_fma_f32 {vr(b+i,2)}, {vr(b+i,2)}, s[{S_C}:{S_C+1}], {vr(MP+2*qt,2)} op_sel_hi:[1,0,0] neg_lo:[0,0,1] neg_hi:[0,0,1]")
                else:
                    for i in range(8): g.e(f"v_fma_f32 v{b+i}, v{b+i}, s{S_C}, -v{self.VM+qt}")
                for i in range(8): g.e(f"v_exp_f32 v{b+i}, v{b+i}")
                s = SUM + 2 * qt
                for i in range(0, 8, 2):
                    if pk:
                        if first[qt] and i == 0:
                            g.e(f"v_pk_add_f32 {vr(s,2)}, {vr(b,2)}, {vr(b+2,2)}")
                        elif first[qt] and i == 2: pass
                        else: g.e(f"v_pk_add_f32 {vr(s,2)}, {vr(s,2)}, {vr(b+i,2)}")
                    else:
                        if first[qt] and i == 0: g.e(f"v_mov_b32 v{s}, v{b}\nv_mov_b32 v{s+1}, v{b+1}")
                        else: g.e(f"v_add_f32 v{s}, v{s}, v{b+i}\nv_add_f32 v{s+1}, v{s+1}, v{b+i+1}")
                first[qt] = False
                p = (j * 3 + qt) * 4
                for i in range(4): g.e(f"v_cvt_pk_bf16_f32 v{p+i}, v{b+2*i}, v{b+2*i+1}")
        for qt in range(3): g.e(f"v_add_f32 v{self.VL+qt}, v{SUM+qt*2}, v{SUM+qt*2+1}")
        xreduce(self.VL, 'v_add_f32')
        g.e(f"s_lshl_b32 s{S_T0}, s{S_W}, 11\ns_add_u32 s{S_T0}, s{S_T0}, {SCR}")
        g.e(f"v_add_u32 v{T}, s{S_T0}, v{self.VLANE16}")
        g.e(f"v_xor_b32 v{self.VST}, 4096, v{T}     ; partner (w^2)")
        g.ds(f"ds_write_b128 v{T}, {vr(self.VM)}", 'st')
        g.ds(f"ds_write_b64 v{T}, {vr(self.VM+4, 2)} offset:1024", 'st')

    def stats_combine_read(self):
        g = self.g
        g.ds(f"ds_read_b128 a[240:243], v{self.VST}", 'str')
        g.ds(f"ds_read_b64 a[244:245], v{self.VST} offset:1024", 'str')
    def stats_combine(self):
        g = self.g
        g.c("combine softmax stats with partner wave")
        g.wait(lg='str')
        A, B = self.VFA, self.VFB
        t0, t1 = 238, 239
        for qt in range(3):
            g.e(f"v_accvgpr_read_b32 v{t0}, a{240+qt}")
            g.e(f"v_accvgpr_read_b32 v{t1}, a{243+qt}")
            g.e(f"v_max_f32 v{A+qt}, v{t0}, v{self.VM+qt}")
            g.e(f"v_sub_f32 v{B+qt}, v{t0}, v{A+qt}")
            g.e(f"v_sub_f32 v{A+qt}, v{self.VM+qt}, v{A+qt}")
            g.e(f"v_exp_f32 v{B+qt}, v{B+qt}")
            g.e(f"v_exp_f32 v{A+qt}, v{A+qt}")
            g.e(f"v_mul_f32 v{t1}, v{t1}, v{B+qt}")
            g.e(f"v_fma_f32 v{t1}, v{self.VL+qt}, v{A+qt}, v{t1}")
            g.e(f"v_rcp_f32 v{t1}, v{t1}")
            g.e(f"v_mul_f32 v{A+qt}, v{A+qt}, v{t1}")
            g.e(f"v_mul_f32 v{B+qt}, v{B+qt}, v{t1}")

    OACC = 96
    def pv_step(self, unit, j, after_barrier):
        g = self.g
        f = unit * 16 + 8 + j
        slot = RING[f % 7] * SLOT
        g.c(f"==== PV{unit} step {j} (fill {f})")
        g.e(f"v_add_u32 v{self.VKC}, {slot}, v{self.VV0}")
        for d in range(1, 8): g.e(f"v_xor_b32 v{self.VKC+d}, {32*d}, v{self.VKC}")
        g.wait(vm=('kv', f), lg='all')
        g.e("s_barrier")
        def rd(d):
            a = self.KF + d * 4
            g.ds(f"ds_read_b64_tr_b16 {vr(a,2)}, v{self.VKC+d}", ('v', d))
            g.ds(f"ds_read_b64_tr_b16 {vr(a+2,2)}, v{self.VKC+d} offset:4096", ('v', d))
        for d in range(6): rd(d)
        if j == 0: self.stats_combine_read()
        after_barrier()
        g.try_bg()
        for d in range(8):
            g.wait(lg=('v', d))
            for qt in range(3):
                acc = self.OACC + (d * 3 + qt) * 4
                csrc = '0' if j == 0 else vr(acc)
                g.e(f"v_mfma_f32_16x16x32_bf16 {vr(acc)}, {vr(self.KF + d*4)}, {vr((j*3+qt)*4)}, {csrc}")
                if qt == 0 and d + 6 < 8: rd(d + 6)
        if j == 0: self.stats_combine()

    def o_exchange(self, unit, at_start, after_barrier):
        g = self.g
        g.c(f"==== O exchange + publish unit {unit}")
        T = 192
        g.e(f"s_mul_i32 s{S_T0}, s{S_W}, 12288\ns_add_u32 s{S_T0}, s{S_T0}, {SCR}")
        g.e(f"v_add_u32 v{T}, s{S_T0}, v{self.VLANE16}")
        g.e(f"s_xor_b32 s{S_T1}, s{S_W}, 2\ns_mul_i32 s{S_T1}, s{S_T1}, 12288\ns_add_u32 s{S_T1}, s{S_T1}, {SCR}")
        g.e(f"v_add_u32 v{T+1}, s{S_T1}, v{self.VLANE16}")
        at_start()
        for i in range(12):
            g.ds(f"ds_write_b128 v{T}, {vr(self.OACC + 48 + i*4)} offset:{i*1024}", 'ow')
            qt = i % 3
            for r in range(4):
                a = self.OACC + i * 4 + r
                g.e(f"v_mul_f32 v{a}, v{a}, v{self.VFA+qt}")
        g.wait(lg='all')
        g.e("s_barrier")
        order = [(2 * ks + h) * 3 + qt for ks in range(2) for qt in range(3) for h in range(2)]
        for i in order:
            g.ds(f"ds_read_b128 {vr(i*4)}, v{T+1} offset:{i*1024}", ('or', i))
        after_barrier()
        pol = self.o.get('opol', 'sc1').replace('none', '')
        g.e(f"s_add_u32 s{S_T0}, s{S_OST}, {unit*24576}\ns_add_u32 s{S_T1}, s{S_T0}, 4096\ns_add_u32 s{S_T2}, s{S_T0}, 8192")
        for ks in range(2):
            for qt in range(3):
                dst = 48 + (ks * 3 + qt) * 4
                for h in range(2):
                    i = (2 * ks + h) * 3 + qt
                    g.wait(lg=('or', i))
                    for r in range(4):
                        a = self.OACC + i * 4 + r
                        g.e(f"v_fma_f32 v{a}, v{i*4+r}, v{self.VFB+qt}, v{a}")
                    a = self.OACC + i * 4
                    g.e(f"v_cvt_pk_bf16_f32 v{dst+2*h}, v{a}, v{a+1}\nv_cvt_pk_bf16_f32 v{dst+2*h+1}, v{a+2}, v{a+3}")
                g.vm(f"buffer_store_dwordx4 {vr(dst)}, v{self.VLANE16}, s[{S_WS}:{S_WS+3}], s{S_T0+qt} offen offset:{ks*1024} {pol}", ('ost', unit))

    def nonce_write(self, t):
        g = self.g
        g.e(f"s_memrealtime s[{S_TS}:{S_TS+1}]\ns_waitcnt lgkmcnt(0)"); g.lgq = []
        g.e(f"s_or_b32 s{S_T1}, s{S_TS}, 1")
        g.e(f"s_lshl_b32 s{S_T0}, s2, 14\ns_add_u32 s{S_T0}, s{S_T0}, s{S_M0W4}\ns_add_u32 s{S_T0}, s{S_T0}, 4")
        g.e(f"v_mov_b32 v{t}, s{S_T1}\nv_lshl_add_u32 v{t+1}, v{self.VLANE16}, 4, s{S_T0}")
        g.vm(f"buffer_store_dword v{t}, v{t+1}, s[{S_DBG}:{S_DBG+3}], 0 offen sc1", 'noncew')
    def nonce_issue(self, t):
        g = self.g
        g.vm(f"buffer_load_dword v{t}, off, s[{S_DBG}:{S_DBG+3}], 0 offset:4 sc1", 'nonce')
    def nonce_take(self, t):
        g = self.g
        on = g.bg_on; g.bg_on = False
        g.wait(vm='nonce')
        g.e(f"s_mov_b32 s{S_CNT}, 0")
        g.e("L_nonce:")
        g.e(f"v_readfirstlane_b32 s{S_NONCE}, v{t}")
        g.e(f"s_cmp_lg_u32 s{S_NONCE}, 0\ns_cbranch_scc1 L_nonce_ok")
        g.e(f"s_add_u32 s{S_CNT}, s{S_CNT}, 1\ns_cmp_gt_u32 s{S_CNT}, 20000\ns_cbranch_scc1 L_nonce_ok")
        g.e("s_sleep 2")
        g.e(f"buffer_load_dword v{t}, off, s[{S_DBG}:{S_DBG+3}], 0 offset:4 sc1")
        g.e("s_waitcnt vmcnt(0)\ns_branch L_nonce")
        g.e("L_nonce_ok:")
        g.bg_on = on
    def flag(self, r, t):
        g = self.g
        g.c(f"publish flag round {r}")
        g.e(f"s_lshl_b32 s{S_T0}, s{S_W}, 28\ns_add_u32 s{S_T0}, s{S_T0}, s{S_FLAG}")
        g.e(f"v_lshlrev_b32 v{t}, 24, v{self.VLANE16}\nv_lshrrev_b32 v{t+1}, 8, v{self.VLANE16}\nv_lshl_or_b32 v{t}, v{t+1}, 28, v{t}")
        g.e(f"v_or_b32 v{t}, s{S_T0}, v{t}\nv_mov_b32 v{t+1}, s{S_NONCE}")
        g.vm(f"buffer_store_dword v{t+1}, v{t}, s[{S_WS}:{S_WS+3}], 0 offen offset:{2048*r} sc1", ('flag', r))
    def poll_addr(self, t):
        self.g.e(f"v_bfe_u32 v{t}, v{self.VLANE16}, 4, 2\nv_lshl_add_u32 v{t}, v{t}, 2, s{S_POLL}")
    def poll_issue(self, r, t):
        g = self.g
        self.poll_addr(t)
        g.vm(f"buffer_load_dword v{self.VPOLL}, v{t}, s[{S_WS}:{S_WS+3}], 0 offen offset:{2048*r} sc1", 'poll')
    def poll_check(self, r, t):
        g = self.g
        on = g.bg_on; g.bg_on = False
        self.poll_addr(t)
        g.wait(vm='poll')
        g.e(f"s_mov_b32 s{S_CNT}, 0")
        g.e(f"L_poll{r}:")
        g.e(f"v_cmp_eq_u32 vcc, s{S_NONCE}, v{self.VPOLL}")
        g.e(f"s_cmp_eq_u64 vcc, -1\ns_cbranch_scc1 L_polled{r}")
        g.e(f"s_add_u32 s{S_CNT}, s{S_CNT}, 1\ns_cmp_gt_u32 s{S_CNT}, 20000\ns_cbranch_scc1 L_polled{r}")
        g.e(f"s_sleep {self.opt('sleep', 2)}")
        g.e(f"buffer_load_dword v{self.VPOLL}, v{t}, s[{S_WS}:{S_WS+3}], 0 offen offset:{2048*r} sc1")
        g.e("s_waitcnt vmcnt(0)")
        g.e(f"s_branch L_poll{r}")
        g.e(f"L_polled{r}:")
        g.bg_on = on
    def wo_warm(self, t, gap):
        g = self.g
        mode = self.o.get('wowarmmode', '128')
        if mode == '128':
            g.e(f"v_bfe_u32 v{t}, v{self.VLANE16}, 4, 2\nv_lshlrev_b32 v{t}, 7, v{t}\nv_lshrrev_b32 v{t+1}, 6, v{self.VLANE16}\nv_lshl_add_u32 v{t}, v{t+1}, 10, v{t}")
            for i in range(2):
                g.bg(f"s_add_u32 s{S_BG1}, s{S_WOPF}, {i*16384}", f"buffer_load_dword a246, v{t}, s[{S_WO}:{S_WO+3}], s{S_BG1} offen {self.o.get('wowarmpol','')}", 'wowarm', gap)
        elif mode == 'full':
            g.e(f"v_and_b32 v{t}, 511, v{self.VLANE16}\nv_lshrrev_b32 v{t+1}, 9, v{self.VLANE16}\nv_lshl_add_u32 v{t}, v{t+1}, 10, v{t}")
            for i in range(16):
                g.bg(f"s_add_u32 s{S_BG1}, s{S_WOPF}, {i*2048}", f"buffer_load_dwordx4 a[248:251], v{t}, s[{S_WO}:{S_WO+3}], s{S_BG1} offen {self.o.get('wowarmpol','')}", 'wowarm', gap)

    OPACC = 192
    def setup_op_addr(self, T):
        g = self.g; L = self.VLANE16
        g.c("out-proj addresses")
        g.e(f"v_lshrrev_b32 v{T}, 7, v{L}\nv_bfe_u32 v{T+1}, v{L}, 4, 3\nv_and_b32 v{T+2}, 6, v{T}\nv_xor_b32 v{T+2}, v{T+2}, v{T+1}\nv_lshlrev_b32 v{T+2}, 4, v{T+2}\nv_lshl_add_u32 v{T+2}, v{T}, 10, v{T+2}")
        for j in range(4): g.e(f"v_add_u32 v{self.VDO+j}, {j*7168}, v{T+2}")
        g.e(f"v_lshrrev_b32 v{T}, 6, v{L}\nv_bfe_u32 v{T+1}, v{L}, 7, 2\nv_lshlrev_b32 v{T+1}, 5, v{T+1}\nv_lshl_add_u32 v{T+1}, v{T}, 7, v{T+1}\nv_bfe_u32 v{T+2}, v{L}, 4, 2")
        g.e(f"v_lshl_add_u32 v{T+1}, v{T+2}, 3, v{T+1}\nv_add_u32 v{self.VO0}, s{S_M0W4}, v{T+1}")
    def op_loc(self, r, n):
        if r == 0: return RING[(27 + n % 4) % 7]
        loc = [RING[(32 + i) % 7] for i in range(7)] + [7, 8, 9]
        return loc[n % 10]
    def op_wo(self, r, n, gap):
        g = self.g
        pol = self.o.get('wopol', '')
        for j in range(4):
            pre = f"s_add_u32 m0, s{S_M0W4}, {self.op_loc(r, n)*SLOT}   ; wo r{r} n{n}\ns_add_u32 s{S_BG0}, s{S_WOH + (n>>2)}, {r*131072 + (n&3)*32768}" if j == 0 else None
            g.bg(pre, f"buffer_load_dwordx4 v{self.VDO+j}, s[{S_WO}:{S_WO+3}], s{S_BG0} offen offset:{1024*j} {pol} lds", ('wo', r, n), gap)
    NB = 6
    def op_o(self, r, n, gap):
        g = self.g
        for qt in range(3):
            pre = f"s_add_u32 s{S_BG1}, s{S_OH + (n>>2)}, {r*24576 + qt*4096}"
            g.bg(pre, f"buffer_load_dwordx4 {ar((n % self.NB)*12 + qt*4)}, v{self.VLANE16}, s[{S_WS}:{S_WS+3}], s{S_BG1} offen offset:{(n&3)*1024} sc1", ('ob', r, n), gap)
    def op_step(self, r, n, release):
        g = self.g
        g.c(f"==== OP round {r} step {n}")
        VOC = self.VKC + (n & 1) * 4
        AF = self.KF + (n & 1) * 16
        g.e(f"v_add_u32 v{VOC}, {self.op_loc(r, n)*SLOT}, v{self.VO0}")
        for nu in range(1, 4): g.e(f"v_xor_b32 v{VOC+nu}, {32*nu}, v{VOC}")
        g.wait(vm=('wo', r, n))
        for nu in range(4):
            a = AF + nu * 4
            g.ds(f"ds_read_b64_tr_b16 {vr(a,2)}, v{VOC+nu}", ('a', n, nu))
            g.ds(f"ds_read_b64_tr_b16 {vr(a+2,2)}, v{VOC+nu} offset:2048", ('a', n, nu))
        release()
        g.try_bg()
        g.wait(vm=('ob', r, n))
        for nu in range(4):
            g.wait(lg=('a', n, nu))
            for qt in range(3):
                acc = self.OPACC + (nu * 3 + qt) * 4
                csrc = '0' if (r == 0 and n == 0) else ar(acc)
                g.e(f"v_mfma_f32_16x16x32_bf16 {ar(acc)}, {vr(AF + nu*4)}, {ar((n % self.NB)*12 + qt*4)}, {csrc}")

    def final(self):
        g = self.g; L16 = self.VLANE16
        g.c("==== final reduce")
        g.e(f"s_mul_i32 s{S_T0}, s{S_W}, 12288\ns_add_u32 s{S_T0}, s{S_T0}, {SCR}\nv_add_u32 v100, s{S_T0}, v{L16}")
        g.e(f"s_add_u32 s{S_T0}, s{S_M0W3}, {SCR}\nv_add_u32 v103, s{S_T0}, v{L16}")
        g.e(f"v_bfe_u32 v101, v{L16}, 4, 4\nv_lshrrev_b32 v102, 8, v{L16}\nv_lshlrev_b32 v101, 11, v101\nv_lshl_add_u32 v101, v102, 3, v101")
        g.e(f"s_mul_i32 s{S_T0}, s{S_OB}, {96*2048}\ns_mul_i32 s{S_T1}, s{S_MH}, {48*2048}\ns_add_u32 s{S_T0}, s{S_T0}, s{S_T1}")
        g.e(f"s_lshl_b32 s{S_T1}, s{S_BR}, 10\ns_add_u32 s{S_T0}, s{S_T0}, s{S_T1}\ns_lshl_b32 s{S_T1}, s{S_NT}, 7\ns_add_u32 s{S_T0}, s{S_T0}, s{S_T1}\ns_lshl_b32 s{S_T1}, s{S_W}, 5\ns_add_u32 s{S_T0}, s{S_T0}, s{S_T1}")
        g.e("s_barrier")
        for i in range(12):
            g.ds(f"ds_write_b128 v100, {ar(self.OPACC + i*4)} offset:{i*1024}", 'fw')
        g.wait(lg='all')
        g.e("s_barrier")
        for qt in range(3):
            for src in range(4):
                g.ds(f"ds_read_b128 {vr((src*3+qt)*4)}, v103 offset:{src*12288 + qt*1024}", ('fr', qt))
        for qt in range(3):
            g.wait(lg=('fr', qt))
            for r in range(4):
                a = qt * 4 + r
                g.e(f"v_add_f32 v{a}, v{a}, v{12+a}\nv_add_f32 v{24+a}, v{24+a}, v{36+a}\nv_add_f32 v{a}, v{a}, v{24+a}")
            g.e(f"v_cvt_pk_bf16_f32 v{48+qt*2}, v{qt*4}, v{qt*4+1}\nv_cvt_pk_bf16_f32 v{49+qt*2}, v{qt*4+2}, v{qt*4+3}")
            if qt: g.e(f"s_add_u32 s{S_T0}, s{S_T0}, {16*2048}")
            g.vm(f"buffer_store_dwordx2 {vr(48+qt*2,2)}, v101, s[{S_OUT}:{S_OUT+3}], s{S_T0} offen", 'out')

def build(opts):
    k = K(opts); g = k.g
    smgap = k.opt('smgap', 200)
    opgap = k.opt('opgap', 16)
    rel = {('q', 5): [0], ('q', 6): [1, 2], ('q', 7): [3, 4], 'qx': [5, 6],
           ('s', 0, 4): [7], ('s', 0, 5): [8], ('s', 0, 6): [9], ('s', 0, 7): [10],
           ('pv', 0, 1): [14], ('pv', 0, 3): [15], ('pv', 0, 5): [16], ('pv', 0, 6): [17], ('pv', 0, 7): [18],
           ('ox', 0): [19, 20],
           ('s', 1, 1): [21], ('s', 1, 3): [22], ('s', 1, 4): [23], ('s', 1, 5): [24], ('s', 1, 6): [25], ('s', 1, 7): [26],
           ('pv', 1, 3): [30], ('pv', 1, 4): [31], ('pv', 1, 5): [32], ('pv', 1, 6): [33], ('pv', 1, 7): [34],
           ('ox', 1): [35, 36, 37], ('oxb', 1): [38]}
    if opts.get('nowo2pf'):
        for kk in [('pv', 1, 5), ('pv', 1, 6), ('pv', 1, 7), ('ox', 1), ('oxb', 1)]: del rel[kk]
    def R(key, gap=None):
        def fn():
            for f in rel.get(key, []): k.kv_fill(f, gap)
        return fn
    g.e("L_start:")
    k.prologue("L_end")
    k.stamp("id known")
    k.srds()
    k.q_fill(0); k.q_fill(1); g.flush_bg()
    k.nonce_write(200)
    k.ids2()
    k.srds2()
    k.stamp("issued first")
    g.bg_on = True
    for st in range(8):
        if st == 4: k.nonce_issue(200)
        if st == 7: k.nonce_take(200)
        def ab(st=st):
            if st + 2 < 8: k.q_fill(st + 2)
            R(('q', st))()
        k.q_step(st, ab)
        if st in (0, 7): k.stamp(f"q step {st} done")
    k.q_exchange(R('qx'))
    k.stamp("q exch")
    for j in range(8): k.s_step(0, j, R(('s', 0, j)))
    k.stamp("S0")
    for f in (11, 12, 13): k.kv_fill(f, smgap)
    k.softmax(0)
    k.stamp("SM0")
    for j in range(8):
        if j == k.opt('wowarm', 2): k.wo_warm(238, 64)
        k.pv_step(0, j, R(('pv', 0, j)))
    k.stamp("PV0")
    k.o_exchange(0, R(('ox', 0), 128), lambda: None)
    k.stamp("OX0")
    FJ = k.opt('flagstep', 3)
    for j in range(8):
        def ab(j=j):
            if j == FJ: k.flag(0, 232)
            R(('s', 1, j))()
        k.s_step(1, j, ab, extra_wait=[('ost', 0)] if j == FJ else None)
    k.stamp("S1")
    g.flush_bg()
    k.setup_op_addr(232)
    def mid_poll(): k.poll_issue(0, 231)
    def mid_wo():
        for n in range(3): k.op_wo(0, n, 128)
    k.softmax(1, mid={3: mid_poll, 5: mid_wo})
    k.stamp("SM1")
    g.wait(lg='all')
    g.e("s_barrier")
    k.poll_check(0, 231)
    LA0 = 3
    for n in range(LA0): k.op_o(0, n, opgap)
    g.flush_bg()
    for n in range(16):
        def rl(n=n):
            if n + LA0 < 16:
                k.op_wo(0, n + LA0, opgap); k.op_o(0, n + LA0, opgap)
            else:
                k.kv_fill(27 + (n + LA0 - 16), opgap)
        k.op_step(0, n, rl)
    k.stamp("OP1")
    for j in range(8): k.pv_step(1, j, R(('pv', 1, j)))
    k.stamp("PV1")
    k.o_exchange(1, R(('ox', 1), 96), R(('oxb', 1), 96))
    k.stamp("OX1")
    g.wait(vm=('ost', 1))
    k.stamp("ost1 done")
    g.e("s_barrier")
    k.flag(1, 232)
    g.flush_bg()
    for n in (range(10) if opts.get('nowo2pf') else (7, 8, 9)): k.op_wo(1, n, 64)
    g.flush_bg()
    k.stamp("flagged")
    k.poll_issue(1, 231)
    k.poll_check(1, 231)
    k.stamp("polled")
    LA1 = k.opt('la1', 4)
    for n in range(LA1): k.op_o(1, n, opgap)
    g.flush_bg()
    for n in range(16):
        def rl(n=n):
            if n + LA1 < 16: k.op_o(1, n + LA1, opgap)
            if n >= 1 and n + 9 < 16: k.op_wo(1, n + 9, opgap)
        k.op_step(1, n, rl)
    k.stamp("OP2")
    g.bg_on = False
    k.final()
    k.stamp("end")
    k.stamp_flush()
    g.e("s_waitcnt vmcnt(0)")
    if opts.get('dbgtime'):
        g.e(f"s_memtime s[{S_TS}:{S_TS+1}]\ns_memrealtime s[98:99]\ns_waitcnt lgkmcnt(0)")
        g.e(f"s_sub_u32 s{S_TS}, s{S_TS}, s{S_TSB}\ns_sub_u32 s98, s98, s96")
        g.e(f"v_mov_b32 v0, s{S_TS}\nv_mov_b32 v1, s98\nv_mov_b32 v2, s96\nv_mov_b32 v3, 0")
        g.e(f"s_cmp_eq_u32 s2, 255\ns_cselect_b32 s{S_T0}, 48, 4096\ns_cmp_eq_u32 s2, 0\ns_cselect_b32 s{S_T0}, 16, s{S_T0}\ns_add_u32 s{S_T0}, s{S_T0}, s{S_M0W4}")
        g.e(f"v_lshl_add_u32 v4, v{k.VLANE16}, 4, s{S_T0}")
        g.e(f"buffer_store_dwordx4 v[0:3], v4, s[{S_DBG}:{S_DBG+3}], 0 offen\ns_waitcnt vmcnt(0)")
    g.e("L_end:\ns_endpgm")
    t = g.finalize()
    print("nops", g.nops, "maxvm", g.maxvm, "ninstr", len(g.ins), "est cycles", g.cyc, file=sys.stderr)
    s = header([f"; @launch grid=(256,1,1) block=(256,1,1) lds={LDS_BYTES}"])
    s += kstart(NAME) + t
    s += kdesc(NAME, 512, 102, 256)
    return s

if __name__ == "__main__":
    out = sys.argv[1]
    opts = {}
    for a in sys.argv[2:]:
        kk, _, vv = a.partition('=')
        opts[kk] = vv if vv else True
    txt = build(opts)
    import subprocess, re
    open(out, "w").write(txt.replace("CODE_BYTES", "0x12345"))
    subprocess.check_call(["clang", "-x", "assembler", "-target", "amdgcn-amd-amdhsa", "-mcpu=gfx950", "-c", out, "-o", "gen_tmp.o"])
    h = subprocess.check_output(["llvm-objdump", "-h", "gen_tmp.o"], text=True)
    size = int(re.search(r"\.text\s+([0-9a-f]+)", h).group(1), 16)
    print("code bytes", size, file=sys.stderr)
    open(out, "w").write(txt.replace("CODE_BYTES", str(size)))
```
